```python
import torch

def _softmax(x, axis=-1):
    return torch.softmax(x, dim=axis)
def _gelu(x):
    return torch.nn.functional.gelu(x, approximate="tanh")
def _silu(x):
    return torch.nn.functional.silu(x)
def _sigmoid(x):
    return torch.sigmoid(x)
def _layernorm(x, axis=-1, eps=1e-5):
    m = x.mean(dim=axis, keepdim=True)
    v = x.var(dim=axis, keepdim=True, unbiased=False)
    return (x - m) / torch.sqrt(v + eps)
def _scatter_add(tgt, idx, src, axis=0):
    return tgt.clone().index_add_(axis, idx, src)
def _segment_sum(src, seg, n):
    out = torch.zeros((n,) + src.shape[1:], dtype=src.dtype)
    return out.index_add_(0, seg, src)
def _pad(x, pw):
    flat = tuple(v for pair in reversed(pw) for v in pair)
    return torch.nn.functional.pad(x, flat)

kernel_name = 'standalone__deep_cross_pnn__recsys'

def setup_inputs():

    _w = (lambda a: (lambda t: t.to(torch.bfloat16) if t.is_floating_point() else t)(torch.as_tensor(a)))
    B, F, D, V = 4096, 100, 64, min(100000, 100000)
    H = 4 * D
    return {
        "idx": _w((lambda lo, hi, *s: torch.randint(lo, hi, s))(0, V, B, F).to(torch.int64)),
        "table": _w((lambda *s: torch.randn(*s, dtype=torch.bfloat16) * 1.6)(V, D) * (D ** -0.5)),
        "w_p": _w((lambda *s: torch.randn(*s, dtype=torch.bfloat16) * 0.05)(F * F) * ((F * F) ** -0.5)),
        "w1": _w((lambda *s: torch.randn(*s, dtype=torch.bfloat16) * 1.6)(F * D, H) * ((F * D) ** -0.5)),
        "b1": _w((lambda *s: torch.randn(*s, dtype=torch.bfloat16) * 12.8)(H) * 0.01),
        "w2": _w((lambda *s: torch.randn(*s, dtype=torch.bfloat16) * 0.05)(H) * (H ** -0.5)),
        "b2": _w((lambda *s: torch.randn(*s, dtype=torch.bfloat16) * 3.2)(1) * 0.01),
    }

def reference(idx, table, w_p, w1, b1, w2, b2):
    emb = table[idx]
    B = emb.shape[0]; F = emb.shape[1]; D = emb.shape[2]
    ip = torch.einsum('bid,bjd->bij', emb, emb)
    ip = ip.reshape(B, F * F)
    logit_p = ip @ w_p
    z = emb.reshape(B, F * D)
    h = _gelu(z @ w1 + b1)
    logit_d = h @ w2 + b2
    return logit_p + logit_d
```

```python
import re

NAME = "standalone__deep_cross_pnn__recsys_kernel"

HEADER_COMMENT = """; Kernarg layout for this problem (80 bytes, ptrs only, base s[0:1]):
;   offset  72: d_ws      268435456 bytes workspace (unspecified values whenever your kernel or launch list starts; a list's later launches find what earlier ones wrote)
; grid=ceil(out_elems/256), lds=0). Harness parses it; keep it on one line.
"""


def header(grid, block, lds):
    return HEADER_COMMENT + f"""; @launch grid=({grid},1,1) block=({block},1,1) lds={lds}
.amdgcn_target "amdgcn-amd-amdhsa--gfx950"
.text
.globl {NAME}
.p2align 8
.type {NAME},@function
{NAME}:
"""


def footer(vgpr=512, acc=256):
    return f"""
s_endpgm
.section .rodata,"a"
.p2align 6
.amdhsa_kernel {NAME}
  .amdhsa_next_free_vgpr {vgpr}
  .amdhsa_next_free_sgpr 102
  .amdhsa_accum_offset {acc}
  .amdhsa_group_segment_fixed_size 0
  .amdhsa_kernarg_size 80
  .amdhsa_user_sgpr_count 2
  .amdhsa_user_sgpr_kernarg_segment_ptr 1
  .amdhsa_system_sgpr_workgroup_id_x 1
.end_amdhsa_kernel
"""


REG_RE = re.compile(r"^([vas])(\d+)$|^([vas])\[(\d+):(\d+)\]$")
TRANS = ("v_exp_", "v_log_", "v_rcp_", "v_rsq_", "v_sqrt_", "v_sin_", "v_cos_")


def regs(tok):
    tok = tok.strip()
    if tok in ("vcc", "vcc_lo", "vcc_hi"):
        return {"vcc"}
    if tok in ("exec", "exec_lo", "exec_hi"):
        return {"exec"}
    if tok == "m0":
        return {"m0"}
    tok = tok.strip("|").lstrip("-").strip("|")
    m = REG_RE.match(tok)
    if not m:
        return set()
    if m.group(1):
        return {m.group(1) + m.group(2)}
    return {m.group(3) + str(i) for i in range(int(m.group(4)), int(m.group(5)) + 1)}


class Ins:
    __slots__ = ("text", "op", "kind", "wr", "rd", "srcC", "srcAB", "passes", "dpp", "trans", "lds_dma",
                 "wide_store", "lane_op", "permlane", "states", "dtuple", "ctuple")

    def __init__(self, text):
        self.text = text
        t = text.split(";")[0].strip()
        parts = t.split(None, 1)
        self.op = op = parts[0]
        rest = parts[1] if len(parts) > 1 else ""
        ops = [x.strip() for x in rest.split(",")] if rest else []
        mods = ""
        if ops:
            last = ops[-1].split(None, 1)
            if last:
                ops[-1] = last[0]
                mods = last[1] if len(last) > 1 else ""
        self.wr = set(); self.rd = set(); self.srcC = set(); self.srcAB = set()
        self.passes = 0; self.dpp = False; self.trans = False; self.lds_dma = False
        self.wide_store = set(); self.lane_op = False; self.permlane = False
        self.states = 1; self.dtuple = None; self.ctuple = None
        if op.endswith(":"):
            self.kind = "label"; self.states = 0
        elif op == "s_nop":
            self.kind = "nop"; self.states = int(ops[0], 0) + 1
        elif op.startswith("v_mfma"):
            self.kind = "mfma"
            self.passes = 8 if "32x32x16" in op else 4
            assert "32x32x16" in op or "16x16x32" in op
            self.wr = regs(ops[0]); self.srcAB = regs(ops[1]) | regs(ops[2]); self.srcC = regs(ops[3])
            self.rd = self.srcAB | self.srcC
            self.dtuple = ops[0]; self.ctuple = ops[3]
        elif op.startswith("v_"):
            self.kind = "valu"
            self.wr = regs(ops[0])
            for o in ops[1:]:
                self.rd |= regs(o)
            if op.startswith(("v_fmac", "v_writelane", "v_mac")) or "_dpp" in op:
                self.rd |= regs(ops[0])
            if op.startswith("v_permlane"):
                self.permlane = True
                self.wr |= regs(ops[1]); self.rd |= regs(ops[0])
            if op.startswith("v_cndmask") and len(ops) == 3:
                self.rd |= {"vcc"}
            if op.startswith(("v_add_co", "v_sub_co", "v_addc", "v_subb")):
                self.wr |= regs(ops[1])
            self.dpp = "_dpp" in op
            self.trans = op.startswith(TRANS)
            self.lane_op = op.startswith(("v_readlane", "v_readfirstlane"))
        elif op.startswith("ds_"):
            self.kind = "ds"
            if op.startswith(("ds_read", "ds_bpermute", "ds_permute", "ds_swizzle")):
                self.wr = regs(ops[0])
                for o in ops[1:]:
                    self.rd |= regs(o)
            else:
                for o in ops:
                    self.rd |= regs(o)
        elif op.startswith(("buffer_", "global_")):
            self.kind = "vmem"
            if " lds" in (" " + mods):
                self.lds_dma = True
                for o in ops:
                    self.rd |= regs(o)
                self.rd |= {"m0"}
            elif "load" in op:
                self.wr = regs(ops[0])
                for o in ops[1:]:
                    self.rd |= regs(o)
            else:
                for o in ops:
                    self.rd |= regs(o)
                if "atomic" in op and "sc0" in mods:
                    self.wr = regs(ops[0])
                if "x4" in op or "x3" in op:
                    self.wide_store = regs(ops[0])
        elif op.startswith("s_"):
            self.kind = "salu"
            if op.startswith(("s_waitcnt", "s_barrier", "s_cbranch", "s_branch", "s_endpgm", "s_cmp", "s_setprio",
                              "s_sleep")):
                for o in ops:
                    self.rd |= regs(o)
            else:
                self.wr = regs(ops[0]) if ops else set()
                for o in ops[1:]:
                    self.rd |= regs(o)
                if "saveexec" in op:
                    self.wr |= {"exec"}
        else:
            raise ValueError("unknown instruction: " + text)


def required_gap(p, c):
    need = 0
    if p.kind == "valu":
        vw = {r for r in p.wr if r[0] in "va" and r != "vcc"}
        sw = {r for r in p.wr if r[0] == "s" or r == "vcc"}
        if c.kind == "mfma" and vw & c.rd:
            need = max(need, 2)
        if c.kind == "valu":
            if c.dpp and vw & c.rd:
                need = max(need, 2)
            if c.permlane and vw & c.rd:
                need = max(need, 2)
            if c.lane_op and vw & c.rd:
                need = max(need, 1)
            if sw & c.rd:
                need = max(need, 4 if c.op.startswith(("v_readlane", "v_writelane")) else 2)
            if p.trans and not c.trans and vw & (c.rd | c.wr):
                need = max(need, 1)
            if p.trans and c.trans and vw & c.rd:
                need = max(need, 1)
        if c.kind == "vmem" and sw & c.rd:
            need = max(need, 5)
        if c.kind == "salu" and sw & c.rd:
            need = max(need, 1)
        assert "exec" not in p.wr, p.text
    if p.kind == "mfma":
        big = 12 if p.passes == 8 else 8
        if c.kind == "mfma":
            if p.wr & c.srcAB:
                need = max(need, big)
            if p.wr & (c.srcC | c.wr):
                if c.ctuple == p.dtuple and c.dtuple == p.dtuple and c.passes == p.passes:
                    pass
                else:
                    need = max(need, 10 if p.passes == 8 else 6)
        elif c.kind in ("valu", "ds", "vmem"):
            if p.wr & (c.rd | c.wr):
                need = max(need, big)
            if c.kind == "valu" and p.srcC & c.wr:
                need = max(need, 7 if p.passes == 8 else 3)
    if p.kind == "salu" and "m0" in p.wr and c.lds_dma:
        need = max(need, 1)
    if p.kind == "vmem" and p.wide_store and c.kind in ("valu", "ds", "vmem", "mfma") and p.wide_store & c.wr:
        need = max(need, 2)
    return need


class Asm:
    def __init__(self):
        self.L = []
        self.lg = []
        self.lg_done = 0
        self.vm = []
        self.vm_done = 0
        self.nops = 0
        self.max_lg = 0

    def raw(self, text):
        self.L.append(Ins(text))

    def __call__(self, text):
        ins = Ins(text)
        assert ins.kind not in ("ds", "vmem"), "use ds()/vmem(): " + text
        self.L.append(ins)

    def ds(self, text, tag=None):
        self.L.append(Ins(text)); self.lg.append(tag)
        self.max_lg = max(self.max_lg, len(self.lg) - self.lg_done)
        assert len(self.lg) - self.lg_done <= 15, "more than 15 LDS ops outstanding at: " + text

    def vmem(self, text, tag=None):
        self.L.append(Ins(text)); self.vm.append(tag)
        assert len(self.vm) - self.vm_done <= 63, "vmcnt overflow at " + text

    @staticmethod
    def _need(lst, done, tags):
        if tags == "all":
            idx = len(lst)
        else:
            if isinstance(tags, str):
                tags = [tags]
            idx = 0
            for t in tags:
                found = [i for i, x in enumerate(lst) if x == t]
                assert found, f"tag {t} never issued"
                idx = max(idx, found[-1] + 1)
        return idx

    def wait(self, lg=None, vm=None):
        parts = []
        if vm is not None:
            idx = self._need(self.vm, self.vm_done, vm)
            if idx > self.vm_done:
                parts.append(f"vmcnt({len(self.vm) - idx})"); self.vm_done = idx
        if lg is not None:
            idx = self._need(self.lg, self.lg_done, lg)
            if idx > self.lg_done:
                parts.append(f"lgkmcnt({len(self.lg) - idx})"); self.lg_done = idx
        if parts:
            self.L.append(Ins("s_waitcnt " + " ".join(parts)))

    def wait_lg0(self):
        self.L.append(Ins("s_waitcnt lgkmcnt(0)")); self.lg_done = len(self.lg)

    def finish(self):
        out = []
        for ins in self.L:
            if ins.kind != "label":
                need = 0
                dist = 0
                for p in reversed(out):
                    if dist >= 12:
                        break
                    g = required_gap(p, ins)
                    if g > dist:
                        need = max(need, g - dist)
                    dist += p.states
                if need:
                    out.append(Ins(f"s_nop {need - 1}")); self.nops += need
            out.append(ins)
        return "\n".join(("" if i.kind == "label" else "    ") + i.text for i in out)
```

```python
import sys
from asmlib import Asm, header, footer

WREG = 40960
HB = 1 << 20
NPOS = 25


def order(o):
    seq = [o]
    for t in range(25):
        st = t + 4 if t % 4 == o else t
        if st < 25:
            seq.append(st)
    assert sorted(seq) == list(range(25))
    return seq


ORD = [order(o) for o in range(4)]

def ACC(t): return f"v[{16*t}:{16*t+15}]"
def E(kk, mt): b = 64 + 8*kk + 4*mt; return f"v[{b}:{b+3}]"
def Wf(kk, nt): b = 96 + 8*kk + 4*nt; return f"v[{b}:{b+3}]"
def Wh(kk, nt, t): b = 96 + 8*kk + 4*nt + 2*t; return f"v[{b}:{b+1}]"
IDX = 128
vChE, vChO, vB = "v153", "v154", "v155"
def vA(kk): return f"v{156+kk}"
def vW(nt): return f"v{160+nt}"
def vCap(h): return f"v{162+h}"
vAt, vL, vStamp, vM = "v164", "v165", "v166", "v167"
PACC = 168
RAW = 176
WT = 180
DSET = [184, 200]
W5 = 216
SPARE = 240
def FR(g, s, h): b = 32*g + 8*s + 4*h; return f"a[{b}:{b+3}]"
S_IDX, S_TAB, S_W1, S_WP = "s[16:19]", "s[20:23]", "s[24:27]", "s[28:31]"
S_B1, S_W2, S_WS, S_OUT, S_DBG, S_B2 = "s[32:35]", "s[36:39]", "s[40:43]", "s[44:47]", "s[48:51]", "s[52:55]"
sWv, sN, sMt, sO, sLds, sAlo, sAhi, sT = "s56", "s57", "s58", "s59", "s60", "s61", "s62", "s63"
def sSig(p): return f"s{64+p}"
sHi = "s89"
def sMask(a): return f"s[{90+2*a}:{91+2*a}]"
sBb = "s100"
sU = "s101"


def wloc(ga, gb):
    if gb <= 4:
        return ("a", 32*(gb+2) + 4*ga)
    if gb == 5:
        return ("v", W5 + 4*ga)
    return ("a", 224 + 4*ga)


def gen(stamps=False, debug=None):
    a = Asm()
    nst = [0]

    def stamp():
        if stamps:
            a("s_memrealtime s[98:99]")
            a.wait_lg0()
            a(f"v_writelane_b32 {vStamp}, s98, {2*nst[0]}")
            a(f"v_writelane_b32 {vStamp}, s99, {2*nst[0]+1}")
            nst[0] += 1

    a("s_cmp_ge_u32 s2, 256")
    a("s_cbranch_scc1 L_end")
    a("s_load_dwordx4 s[4:7], s[0:1], 0")
    a("s_load_dwordx4 s[8:11], s[0:1], 16")
    a("s_load_dwordx4 s[12:15], s[0:1], 32")
    a("s_load_dwordx4 s[92:95], s[0:1], 48")
    a("s_load_dwordx4 s[64:67], s[0:1], 64")
    if stamps:
        a("s_memrealtime s[98:99]")
    a("v_lshrrev_b32 v1, 6, v0")
    a(f"v_and_b32 {vL}, 63, v0")
    a(f"v_readfirstlane_b32 {sWv}, v1")
    a("s_and_b32 s3, s2, 7")
    a(f"s_lshr_b32 {sN}, s2, 3")
    a(f"s_lshr_b32 {sT}, {sN}, 2")
    a(f"s_and_b32 {sN}, {sN}, 3")
    a(f"s_lshl_b32 {sMt}, s3, 3")
    a(f"s_add_u32 {sMt}, {sMt}, {sT}")
    a(f"s_add_u32 {sO}, {sT}, {sN}")
    a(f"s_and_b32 {sO}, {sO}, 3")
    a(f"v_lshlrev_b32 v2, 4, {vL}")
    a(f"s_mul_i32 {sLds}, {sWv}, {WREG}")
    a(f"s_mul_i32 {sU}, {sWv}, 6400")
    a(f"s_mul_i32 s3, {sMt}, 25600")
    a(f"s_add_u32 s3, s3, {sU}")
    a(f"v_lshrrev_b32 v3, 3, {vL}")
    a(f"v_lshlrev_b32 v3, 9, v3")
    a(f"v_lshrrev_b32 v4, 2, {vL}")
    a(f"v_and_b32 v4, 4, v4")
    a(f"v_and_b32 v5, 7, {vL}")
    a("v_xor_b32 v4, v4, v5")
    a(f"v_lshl_add_u32 {vB}, v4, 4, v3")
    a(f"s_lshl_b32 {sBb}, {sWv}, 15")
    a(f"s_lshl_b32 {sT}, {sN}, 7")
    a(f"s_add_u32 {sBb}, {sBb}, {sT}")
    a.wait_lg0()

    def srd(name, lo, hi, n):
        b = int(name[2:].split(":")[0])
        a(f"s_mov_b32 s{b}, {lo}"); a(f"s_mov_b32 s{b+1}, {hi}")
        a(f"s_mov_b32 s{b+2}, {n}"); a(f"s_mov_b32 s{b+3}, 0x20000")

    srd(S_IDX, "s4", "s5", 1638400)
    a(f"s_add_u32 m0, {sLds}, 16384")
    a(f"s_add_u32 {sT}, s3, 4096")
    for i in range(4):
        a.vmem(f"buffer_load_dwordx4 v2, {S_IDX}, s3 offen offset:{1024*i} lds", "idx")
    a(f"s_add_u32 m0, {sLds}, {16384+4096}")
    srd(S_W1, "s10", "s11", 3276800)
    for i in range(3):
        a.vmem(f"buffer_load_dwordx4 v2, {S_IDX}, {sT} offen offset:{1024*i} lds", "idx")

    def dmaB(p, i, sbase):
        buf = p % 2
        return [("s", f"s_add_u32 m0, {sLds}, {24576 + buf*8192 + i*1024}"),
                ("s", f"s_add_u32 {sT}, {sbase}, {4096*i}"),
                ("vm", f"buffer_load_dwordx4 {vB}, {S_W1}, {sT} offen lds", f"B{p}")]

    def dmaA(p, i):
        buf = p % 3
        base = sAlo if i < 4 else sAhi
        ch = vChO if i & 1 else vChE
        return [("s", f"s_add_u32 m0, {base}, {buf*8192 + (i & 3)*1024}"),
                ("s", f"v_add_u32_dpp {vAt}, v{IDX+p}, {ch} row_newbcast:{i} row_mask:0xf bank_mask:0x3"),
                ("s", f"v_add_u32_dpp {vAt}, v{IDX+p}, {ch} row_newbcast:{i+8} row_mask:0xf bank_mask:0xc"),
                ("vm", f"buffer_load_dwordx4 {vAt}, {S_TAB}, 0 offen lds", f"A{p}")]

    def emit(items):
        for it in items:
            if it[0] == "s": a(it[1])
            elif it[0] == "vm": a.vmem(it[1], it[2])
            elif it[0] == "ds": a.ds(it[1], it[2])
            else: raise ValueError(it)

    a(f"s_lshl_b32 s3, {sO}, 17")
    a(f"s_add_u32 s3, s3, {sBb}")
    for i in range(8):
        emit(dmaB(0, i, "s3"))
    srd(S_WP, "s8", "s9", 20000)
    a(f"s_add_u32 m0, {sLds}, 32768")
    a(f"s_add_u32 {sT}, {sU}, 4096")
    for i in range(4):
        a.vmem(f"buffer_load_dwordx4 v2, {S_WP}, {sU} offen offset:{1024*i} lds", "wp")
    a(f"s_add_u32 m0, {sLds}, {32768+4096}")
    srd(S_TAB, "s6", "s7", 12800000)
    for i in range(3):
        a.vmem(f"buffer_load_dwordx4 v2, {S_WP}, {sT} offen offset:{1024*i} lds", "wp")
    srd(S_B1, "s12", "s13", 512)
    srd(S_W2, "s14", "s15", 512)
    srd(S_B2, "s92", "s93", 2)
    srd(S_OUT, "s94", "s95", 8192)
    srd(S_DBG, "s64", "s65", 256)
    srd(S_WS, "s66", "s67", 2 << 20)
    if stamps:
        a(f"v_writelane_b32 {vStamp}, s98, 0")
        a(f"v_writelane_b32 {vStamp}, s99, 1")
        nst[0] = 1
    a(f"s_lshl_b32 s3, {sO}, 3")
    a(f"s_or_b32 s3, s3, 0x80000")
    for p in range(NPOS):
        packed = sum(ORD[o][p] << (8*o) for o in range(4))
        a(f"s_bfe_u32 {sSig(p)}, {hex(packed)}, s3")
    a(f"s_mov_b32 {sHi}, 0xffff0000")
    for m in range(4):
        a(f"s_mov_b32 s{90+2*m}, {hex(0x000f000f << (4*m))}")
        a(f"s_mov_b32 s{91+2*m}, {hex(0x000f000f << (4*m))}")
    a(f"s_and_b32 s3, {sWv}, 1")
    a(f"s_lshl_b32 s3, s3, 12")
    a(f"s_add_u32 {sAlo}, {sLds}, s3")
    a(f"s_xor_b32 s3, s3, 4096")
    a(f"s_add_u32 {sAhi}, {sLds}, s3")
    a(f"v_lshrrev_b32 v3, 4, {vL}")
    a("v_xor_b32 v4, v5, v3")
    a(f"v_xor_b32 v4, {sWv}, v4")
    a(f"v_lshlrev_b32 {vChE}, 4, v4")
    a(f"v_xor_b32 {vChO}, 64, {vChE}")
    a(f"v_lshrrev_b32 v6, 5, {vL}")
    a(f"v_bfe_u32 v7, {vL}, 1, 3")
    a("v_xor_b32 v7, v7, v6")
    a(f"v_xor_b32 v7, {sWv}, v7")
    a("v_lshlrev_b32 v7, 4, v7")
    a(f"v_and_b32 v8, 31, {vL}")
    a("v_lshl_add_u32 v7, v8, 7, v7")
    a(f"v_add_u32 {vA(0)}, {sLds}, v7")
    for kk in range(1, 4):
        a(f"v_xor_b32 {vA(kk)}, {32*kk}, {vA(0)}")
    a(f"v_bfe_u32 v8, {vL}, 2, 2")
    a(f"v_and_b32 v9, 3, {vL}")
    a("v_lshl_add_u32 v10, v6, 3, v8")
    a("v_lshlrev_b32 v10, 7, v10")
    a("v_and_b32 v11, 1, v3")
    a("v_lshlrev_b32 v11, 1, v11")
    a("v_lshrrev_b32 v12, 1, v9")
    a("v_add_u32 v11, v11, v12")
    a("v_and_b32 v12, 2, v8")
    a("v_lshlrev_b32 v12, 1, v12")
    a("v_xor_b32 v11, v11, v12")
    a(f"s_lshr_b32 s3, {sWv}, 1")
    a("s_lshl_b32 s3, s3, 2")
    a("v_xor_b32 v11, s3, v11")
    a("v_lshl_add_u32 v10, v11, 4, v10")
    a("v_and_b32 v12, 1, v9")
    a("v_lshl_add_u32 v10, v12, 3, v10")
    a(f"s_add_u32 s3, {sLds}, 24576")
    a(f"v_add_u32 {vW(0)}, s3, v10")
    a(f"v_xor_b32 {vW(1)}, 64, {vW(0)}")
    a(f"s_lshl_b32 s3, {sN}, 2")
    a(f"s_add_u32 s3, s3, {sWv}")
    a(f"s_and_b32 {sT}, s3, 7")
    a("s_lshr_b32 s3, s3, 3")
    a("v_and_b32 v12, 1, v9")
    a("v_xor_b32 v12, s3, v12")
    a("v_lshlrev_b32 v12, 12, v12")
    a(f"v_mul_u32_u24 v13, {WREG}, v9")
    a("v_add_u32 v12, v12, v13")
    a("v_xor_b32 v13, v3, v9")
    a(f"v_xor_b32 v13, {sT}, v13")
    a("v_lshl_add_u32 v12, v13, 4, v12")
    a(f"s_lshl_b32 {sT}, {sT}, 8")
    a(f"v_add_u32 {vCap(0)}, {sT}, v12")
    a(f"v_xor_b32 {vCap(1)}, 64, {vCap(0)}")
    a(f"v_mul_u32_u24 v14, {WREG}, v3")
    a(f"v_and_b32 v15, 15, {vL}")
    a("v_mul_u32_u24 v15, 400, v15")
    a(f"s_lshl_b32 s3, {sWv}, 2")
    a("s_add_u32 s3, s3, 16384")
    a("v_add3_u32 v14, v14, v15, s3")
    a(f"v_add_u32 v16, -3, {vL}")
    a("v_max_i32 v16, 0, v16")
    a("v_add_u32 v17, -1, v16")
    a("v_and_b32 v18, 3, v17")
    a("v_add_u32 v19, 4, v17")
    a(f"v_cmp_eq_u32 vcc, {sO}, v18")
    a(f"s_add_u32 s3, {sO}, 20")
    a(f"s_cmp_eq_u32 {sO}, 0")
    a("s_cselect_b32 s3, 64, s3")
    a("v_cndmask_b32 v19, v17, v19, vcc")
    a("v_cmp_le_i32 vcc, s3, v17")
    a(f"v_mov_b32 v18, {sO}")
    a("v_cndmask_b32 v19, v19, v16, vcc")
    a("v_cmp_eq_u32 vcc, 0, v16")
    a("v_lshlrev_b32 v20, 2, v3")
    a("v_lshlrev_b32 v21, 2, v8")
    a("v_cndmask_b32 v19, v19, v18, vcc")
    a("v_lshlrev_b32 v22, 2, v9")
    a("v_lshlrev_b32 v16, 3, v19")
    a("v_lshrrev_b32 v17, 3, v19")
    a(f"v_mul_u32_u24 v17, {WREG}, v17")
    a("v_and_b32 v18, 7, v19")
    a("v_mul_u32_u24 v18, 800, v18")
    a("s_mov_b32 s3, 32768")
    a("v_add3_u32 v17, v17, v18, s3")
    a("v_mul_u32_u24 v23, 200, v9")
    a("v_mul_u32_u24 v24, 200, v8")
    X, Z, Y, U = 28, 36, 44, 52
    for g in range(7):
        if g == 3:
            a.wait(lg="all")
        if g == 6:
            a.wait(lg="all")
        a.ds(f"ds_bpermute_b32 v{X+g}, v20, v16 offset:{16*g}", "bp")
        a.ds(f"ds_bpermute_b32 v{Z+g}, v20, v17 offset:{16*g}", "bp")
        a.ds(f"ds_bpermute_b32 v{Y+g}, v21, v17 offset:{16*g}", "bp")
        a.ds(f"ds_bpermute_b32 v{U+g}, v22, v16 offset:{16*g}", "bp")
    for i in range(32):
        a(f"v_accvgpr_write_b32 a{i}, 0")
    for i in range(8):
        a(f"v_mov_b32 v{PACC+i}, 0")
    for p in range(NPOS):
        a(f"v_lshl_add_u32 v{IDX+p}, {sSig(p)}, 4, v14")
    a.wait(lg="all", vm="idx")
    a("s_barrier")
    stamp()
    for p in range(13):
        a.ds(f"ds_read_b32 v{IDX+p}, v{IDX+p}", f"ix{p}")
    a.wait(lg="ix0")
    a(f"v_lshlrev_b32 v{IDX}, 7, v{IDX}")
    a.wait(lg="ix1")
    a(f"v_lshlrev_b32 v{IDX+1}, 7, v{IDX+1}")
    for i in range(8):
        emit(dmaA(0, i))
    a.wait(lg="all")
    for p in range(13, NPOS):
        a.ds(f"ds_read_b32 v{IDX+p}, v{IDX+p}", f"ix{p}")
    for i in range(8):
        emit(dmaA(1, i))
    a.wait(lg="all")
    for p in range(2, NPOS):
        a(f"v_lshlrev_b32 v{IDX+p}, 7, v{IDX+p}")
    a.wait(vm="wp")
    a("s_barrier")
    pairs = [(ga, gb) for gb in range(7) for ga in range(gb + 1)]
    tmp = [25, 26, 27, 35, 43, 51, 59, 60]
    k = 0
    for (ga, gb) in pairs:
        kind, b = wloc(ga, gb)
        if len(a.lg) - a.lg_done >= 13:
            a.wait(lg=a.lg[a.lg_done + 5])
        t1 = tmp[k % 8]; k += 1
        a(f"v_add3_u32 v{t1}, v{Y+gb}, v{X+ga}, v23")
        a.ds(f"ds_read_b64 {kind}[{b}:{b+1}], v{t1}", f"wr{ga}{gb}a")
        if ga != gb:
            t2 = tmp[k % 8]; k += 1
            a(f"v_add3_u32 v{t2}, v{Z+ga}, v{U+gb}, v24")
            a.ds(f"ds_read_b64_tr_b16 {kind}[{b+2}:{b+3}], v{t2}", f"wr{ga}{gb}b")
    a(f"s_lshl_b32 s3, {sSig(1)}, 17")
    a(f"s_add_u32 s3, s3, {sBb}")
    a.wait(lg="all")
    a("s_barrier")
    for i in range(8):
        emit(dmaB(1, i, "s3"))
    stamp()

    def unpack_to(dst, src, diag):
        if diag:
            return [f"v_lshlrev_b32 v{dst}, 16, v{src}", f"v_and_b32 v{dst+1}, {sHi}, v{src}",
                    f"v_lshlrev_b32 v{dst+2}, 16, v{src+1}", f"v_and_b32 v{dst+3}, {sHi}, v{src+1}"]
        return [f"v_lshlrev_b32 v{dst}, 16, v{src}", f"v_and_b32 v{dst+1}, {sHi}, v{src}",
                f"v_lshlrev_b32 v{src}, 16, v{src+2}", f"v_and_b32 v{src+2}, {sHi}, v{src+2}",
                f"v_lshlrev_b32 v{dst+2}, 16, v{src+1}", f"v_and_b32 v{dst+3}, {sHi}, v{src+1}",
                f"v_lshlrev_b32 v{src+1}, 16, v{src+3}", f"v_and_b32 v{src+3}, {sHi}, v{src+3}",
                f"v_add_f32 v{dst}, v{dst}, v{src}", f"v_add_f32 v{dst+1}, v{dst+1}, v{src+2}",
                f"v_add_f32 v{dst+2}, v{dst+2}, v{src+1}", f"v_add_f32 v{dst+3}, v{dst+3}, v{src+3}"]

    def pre_unpack(ga, gb):
        kind, b = wloc(ga, gb)
        diag = ga == gb
        n = 2 if diag else 4
        if kind == "a":
            out = [f"v_accvgpr_read_b32 v{RAW+i}, a{b+i}" for i in range(n)]
            out += unpack_to(WT, RAW, diag)
            out += [f"v_accvgpr_write_b32 a{b+i}, v{WT+i}" for i in range(4)]
        else:
            out = [f"v_mov_b32 v{RAW+i}, v{b+i}" for i in range(n)]
            out += unpack_to(b, RAW, diag)
        return out

    def pair_unit(ga, gb, dset, wt=WT):
        kind, b = wloc(ga, gb)
        diag = ga == gb
        mf = []
        for h in range(2):
            for s in range(4):
                d = f"v[{dset+4*s}:{dset+4*s+3}]"
                mf.append(f"v_mfma_f32_16x16x32_bf16 {d}, {FR(ga,s,h)}, {FR(gb,s,h)}, {'0' if h == 0 else d}")
        if gb <= 4:
            n = 2 if diag else 4
            prep = [f"v_accvgpr_read_b32 v{RAW+i}, a{b+i}" for i in range(n)] + unpack_to(wt, RAW, diag)
            w = wt
        elif gb == 5:
            prep = []; w = b
        else:
            prep = [f"v_accvgpr_read_b32 v{wt+i}, a{b+i}" for i in range(4)]; w = wt
        fm = []
        for e in range(2):
            for s in range(4):
                pa = f"v[{PACC+2*s}:{PACC+2*s+1}]"
                fm.append(f"v_pk_fma_f32 {pa}, v[{dset+4*s+2*e}:{dset+4*s+2*e+1}], v[{w+2*e}:{w+2*e+1}], {pa}")
        return mf, prep, fm

    sched = {1: [(0, 0)], 5: [(0, 1)], 6: [(1, 1)], 9: [(0, 2)], 10: [(1, 2)], 11: [(2, 2)],
             13: [(0, 3)], 14: [(1, 3)], 15: [(2, 3)], 16: [(3, 3)],
             17: [(0, 4), (1, 4)], 18: [(2, 4)], 19: [(3, 4)], 20: [(4, 4)],
             21: [(0, 5), (1, 5)], 22: [(2, 5), (3, 5)], 23: [(4, 5), (5, 5)]}
    pre = [(g, 5) for g in range(6)] + [(g, 6) for g in range(7)]
    presched = {0: pre[0:2], 2: pre[2:4], 3: pre[4:6], 4: pre[6:8], 7: pre[8:10], 8: pre[10:12], 12: pre[12:13]}

    BW = IDX

    def reads(p, kk):
        ab, bb = (p % 3) * 8192, (p % 2) * 8192
        tag = f"R{p}_{kk}"
        r = []
        for nt in range(2):
            for t in range(2):
                r.append(("ds", f"ds_read_b64_tr_b16 {Wh(kk,nt,t)}, {vW(nt)} offset:{bb + kk*2048 + t*512}", tag))
            r.append(("ds", f"ds_read_b128 {E(kk,nt)}, {vA(kk)} offset:{ab + nt*4096}", tag))
        return r

    def caps(p):
        g, ai = (0, 0) if p == 0 else ((p + 3) // 4, (p - 1) % 4)
        ab = (p % 3) * 8192
        r = [("s", f"s_mov_b64 exec, {sMask(ai)}")]
        for s in range(4):
            for h in range(2):
                r.append(("ds", f"ds_read_b128 {FR(g,s,h)}, {vCap(h)} offset:{ab + [0,128,2048,2176][s]}", f"C{p}"))
        r.append(("s", "s_mov_b64 exec, -1"))
        return r

    def deep(p, kk, tau):
        nt, mt = tau >> 1, tau & 1
        c = "0" if (p == 0 and kk == 0) else ACC(tau)
        return ("s", f"v_mfma_f32_32x32x16_bf16 {ACC(tau)}, {Wf(kk,nt)}, {E(kk,mt)}, {c}")

    def slot(p):
        q = p + 2
        have = q < NPOS
        A = [dmaA(q, i) if have else [] for i in range(8)]
        B = [dmaB(q, i, sSig(q)) if have else [] for i in range(8)]
        units = [pair_unit(ga, gb, DSET[i]) for i, (ga, gb) in enumerate(sched.get(p, []))]
        extra = []
        for (ga, gb) in presched.get(p, []):
            extra += pre_unpack(ga, gb)
        if len(units) == 2:
            early = units[0][1]; f1 = units[0][2]; f2 = units[1][1] + units[1][2]
        elif len(units) == 1:
            early = units[0][1]; f1 = units[0][2][:4]; f2 = units[0][2][4:]
        else:
            early = []; f1 = extra[:len(extra)//2]; f2 = extra[len(extra)//2:]
        def filler(lst, n):
            out = [("s", x) for x in lst[:n]]
            del lst[:n]
            return out
        a.wait(vm=[f"A{p}", f"B{p}"])
        a("s_barrier")
        emit(reads(p, 0))
        if have:
            a(f"s_lshl_b32 {sSig(q)}, {sSig(q)}, 17")
            a(f"s_add_u32 {sSig(q)}, {sSig(q)}, {sBb}")
        emit(A[0])
        emit(reads(p, 1))
        if units:
            mf = units[0][0]
            n = (len(early) + 7) // 8
            for i in range(8):
                a(mf[i])
                emit(filler(early, n))
                if i == 3: emit(A[1])
        else:
            emit(A[1])
        order_tau = [0, 1, 2, 3]
        n1 = (len(f1) + 7) // 8
        r2 = reads(p, 2); r3 = reads(p, 3)
        a.wait(lg=f"R{p}_0")
        emit([deep(p, 0, 0)]); emit(r2[:3]); emit(filler(f1, n1))
        emit([deep(p, 0, 1)]); emit(B[0]); emit(filler(f1, n1))
        emit([deep(p, 0, 2)]); emit(r2[3:]); emit(filler(f1, n1))
        emit([deep(p, 0, 3)]); emit(B[1]); emit(filler(f1, n1))
        a.wait(lg=f"R{p}_1")
        emit([deep(p, 1, 0)]); emit(r3[:3]); emit(filler(f1, n1))
        emit([deep(p, 1, 1)]); emit(A[2]); emit(filler(f1, n1))
        emit([deep(p, 1, 2)]); emit(r3[3:]); emit(filler(f1, n1))
        emit([deep(p, 1, 3)]); emit(B[2]); emit(filler(f1, n1))
        assert not f1
        a.wait(lg=f"R{p}_2")
        emit(caps(p))
        if len(units) == 2:
            mf = units[1][0]
            pre2 = f2[:len(units[1][1])]; del f2[:len(units[1][1])]
            n = (len(pre2) + 7) // 8
            for i in range(8):
                a(mf[i])
                emit(filler(pre2, n))
                if i == 3: emit(B[3])
        else:
            emit(B[3])
        n2 = (len(f2) + 7) // 8
        emit([deep(p, 2, 0)]); emit(A[3])
        emit([deep(p, 2, 1)]); emit(B[4]); emit(filler(f2, n2))
        emit([deep(p, 2, 2)]); emit(A[4]); emit(filler(f2, n2))
        emit([deep(p, 2, 3)]); emit(B[5]); emit(filler(f2, n2))
        a.wait(lg=f"R{p}_3")
        last = [1, 2, 3, 0] if p == NPOS - 1 else [0, 1, 2, 3]
        emit([deep(p, 3, last[0])]); emit(A[5]); emit(filler(f2, n2))
        emit([deep(p, 3, last[1])]); emit(B[6]); emit(filler(f2, n2))
        emit([deep(p, 3, last[2])]); emit(A[6]); emit(filler(f2, n2))
        emit([deep(p, 3, last[3])]); emit(B[7]); emit(filler(f2, n2))
        emit(A[7]); emit(filler(f2, n2))
        assert not f2
        if p == 22:
            a(f"v_lshrrev_b32 {vM}, 5, {vL}")
            a(f"v_lshlrev_b32 {vM}, 3, {vM}")
            a(f"s_lshl_b32 s3, {sN}, 7")
            a(f"s_lshr_b32 {sT}, {sWv}, 1")
            a(f"s_lshl_b32 {sT}, {sT}, 6")
            a(f"s_add_u32 s3, s3, {sT}")
            for r in range(4):
                a.vmem(f"buffer_load_dwordx2 v[{BW+2*r}:{BW+2*r+1}], {vM}, {S_B1}, s3 offen offset:{16*r}", "bw")
            for r in range(4):
                a.vmem(f"buffer_load_dwordx2 v[{BW+8+2*r}:{BW+8+2*r+1}], {vM}, {S_W2}, s3 offen offset:{16*r}", "bw")
            a.vmem(f"buffer_load_ushort v{BW+16}, off, {S_B2}, 0", "bw")
        if p < NPOS - 1:
            a.wait(lg="all")
            if p % 2 == 0 or p >= 21:
                stamp()

    for p in range(NPOS):
        slot(p)

    stamp()
    XA = SPARE
    a(f"v_lshlrev_b32 {vM}, 4, {vL}")
    for t in range(1, 4):
        a(f"s_xor_b32 s3, {sWv}, {t}")
        a(f"s_mul_i32 s3, s3, {WREG}")
        a(f"v_add_u32 v{XA+t-1}, s3, {vM}")
    a(f"v_add_u32 v{XA+3}, {sLds}, {vM}")
    a.wait(lg="all")
    DS3 = [DSET[0], DSET[1], 112]
    WT3 = [WT, RAW, SPARE + 4]
    tail = [pair_unit(g, 6, DS3[g % 3], WT3[g % 3]) for g in range(7)]
    writes = []
    for t in range(1, 4):
        for qd in range(4):
            writes.append(("ds", f"ds_write_b128 v{XA+t-1}, v[{16*t+4*qd}:{16*t+4*qd+3}] "
                                 f"offset:{8192 + (t-1)*4096 + qd*1024}", "xw"))
    for x in tail[0][0]: a(x)
    for x in tail[0][1]: a(x)
    for i in range(8):
        a(tail[1][0][i]); emit([writes[i]])
    for x in tail[1][1]: a(x)
    for i in range(8):
        a(tail[2][0][i])
        if i < 4: emit([writes[8+i]])
        a(tail[0][2][i])
    a.wait(lg="all")
    a("s_barrier")
    for t in range(1, 4):
        for qd in range(4):
            b = 64 + 16*(t-1) + 4*qd
            a.ds(f"ds_read_b128 v[{b}:{b+3}], v{XA+3} offset:{8192 + (t-1)*4096 + qd*1024}", f"xr{t}")
    for x in tail[2][1]: a(x)
    for g in range(3, 7):
        for i in range(8):
            a(tail[g][0][i]); a(tail[g-2][2][i])
        for x in tail[g][1]: a(x)
    a.wait(vm="bw")
    BF, WF = 16, 32
    for r in range(8):
        a(f"v_lshlrev_b32 v{BF+2*r}, 16, v{BW+r}")
        a(f"v_and_b32 v{BF+2*r+1}, {sHi}, v{BW+r}")
    for x in tail[5][2]: a(x)
    for r in range(8):
        a(f"v_lshlrev_b32 v{WF+2*r}, 16, v{BW+8+r}")
        a(f"v_and_b32 v{WF+2*r+1}, {sHi}, v{BW+8+r}")
    for x in tail[6][2]: a(x)
    for t in range(1, 4):
        a.wait(lg=f"xr{t}")
        for r in range(0, 16, 2):
            b = 64 + 16*(t-1) + r
            a(f"v_pk_add_f32 v[{r}:{r+1}], v[{r}:{r+1}], v[{b}:{b+1}]")
    for r in range(0, 16, 2):
        a(f"v_pk_add_f32 v[{r}:{r+1}], v[{r}:{r+1}], v[{BF+r}:{BF+r+1}]")
    K1 = -2.0 * 1.4426950408889634 * 0.7978845608028654
    K2 = K1 * 0.044715
    import struct
    fb = lambda x: hex(struct.unpack("<I", struct.pack("<f", x))[0])
    a(f"s_mov_b32 s4, {fb(K2)}"); a(f"s_mov_b32 s5, {fb(K2)}")
    a(f"v_mov_b32 v48, {fb(K1)}"); a(f"v_mov_b32 v49, {fb(K1)}")
    T = 64
    for r in range(0, 16, 2):
        a(f"v_pk_mul_f32 v[{T+r}:{T+r+1}], v[{r}:{r+1}], v[{r}:{r+1}]")
    for r in range(0, 16, 2):
        a(f"v_pk_fma_f32 v[{T+r}:{T+r+1}], v[{T+r}:{T+r+1}], s[4:5], v[48:49]")
    for r in range(0, 16, 2):
        a(f"v_pk_mul_f32 v[{T+r}:{T+r+1}], v[{T+r}:{T+r+1}], v[{r}:{r+1}]")
    for r in range(16):
        a(f"v_exp_f32 v{T+r}, v{T+r}")
    for r in range(0, 16, 2):
        a(f"v_pk_add_f32 v[{T+r}:{T+r+1}], v[{T+r}:{T+r+1}], 1.0 op_sel_hi:[1,0]")
    for r in range(16):
        a(f"v_rcp_f32 v{T+r}, v{T+r}")
    for r in range(0, 16, 2):
        a(f"v_pk_mul_f32 v[{r}:{r+1}], v[{r}:{r+1}], v[{WF+r}:{WF+r+1}]")
    a(f"v_pk_mul_f32 v[50:51], v[0:1], v[{T}:{T+1}]")
    a(f"v_pk_mul_f32 v[52:53], v[2:3], v[{T+2}:{T+3}]")
    for r in range(4, 16, 4):
        a(f"v_pk_fma_f32 v[50:51], v[{r}:{r+1}], v[{T+r}:{T+r+1}], v[50:51]")
        a(f"v_pk_fma_f32 v[52:53], v[{r+2}:{r+3}], v[{T+r+2}:{T+r+3}], v[52:53]")
    a("v_pk_add_f32 v[50:51], v[50:51], v[52:53]")
    for s in range(4):
        a(f"v_add_f32 v{PACC+2*s}, v{PACC+2*s}, v{PACC+2*s+1}")
    a("v_add_f32 v50, v50, v51")
    a(f"v_permlane32_swap_b32 v{PACC}, v{PACC+2}")
    a(f"v_permlane32_swap_b32 v{PACC+4}, v{PACC+6}")
    a("v_mov_b32 v51, v50")
    a(f"v_add_f32 v{PACC}, v{PACC}, v{PACC+2}")
    a(f"v_add_f32 v{PACC+4}, v{PACC+4}, v{PACC+6}")
    a("v_permlane32_swap_b32 v50, v51")
    a(f"s_lshl_b32 s3, {sMt}, 12")
    a(f"s_add_u32 s6, s3, {HB}")
    a(f"s_lshl_b32 s3, {sN}, 9")
    a(f"s_lshl_b32 {sT}, {sWv}, 7")
    a(f"s_add_u32 s3, s3, {sT}")
    a("s_add_u32 s3, s3, s6")
    a(f"v_lshlrev_b32 v52, 2, {vL}")
    a("v_add_f32 v50, v50, v51")
    for sh in (1, 2, 4, 8):
        for r in (PACC, PACC+4):
            a(f"v_add_f32_dpp v{r}, v{r}, v{r} row_shr:{sh} row_mask:0xf bank_mask:0xf bound_ctrl:0")
        if sh == 1:
            a("s_mov_b64 exec, 0xffffffff")
            a.vmem(f"buffer_store_dword v50, v52, {S_WS}, s3 offen sc1", "st")
            a("s_mov_b64 exec, -1")
    for r in (PACC, PACC+4):
        a(f"v_add_f32_dpp v{r}, v{r}, v{r} row_bcast:15 row_mask:0xa bank_mask:0xf")
    a(f"s_lshl_b32 s3, {sN}, 2")
    a(f"s_add_u32 s3, s3, {sWv}")
    a(f"s_and_b32 {sT}, s3, 7")
    a("s_lshr_b32 s3, s3, 3")
    a("s_lshl_b32 s3, s3, 7")
    a(f"s_lshl_b32 {sT}, {sT}, 3")
    a(f"s_add_u32 s3, s3, {sT}")
    a("s_add_u32 s3, s3, s6")
    a(f"v_lshrrev_b32 v53, 5, {vL}")
    a("v_lshlrev_b32 v53, 2, v53")
    a("s_mov_b32 exec_lo, 0x80000000")
    a("s_mov_b32 exec_hi, 0x80000000")
    a.vmem(f"buffer_store_dword v{PACC}, v53, {S_WS}, s3 offen offset:2048 sc1", "st")
    a.vmem(f"buffer_store_dword v{PACC+4}, v53, {S_WS}, s3 offen offset:{2048+64} sc1", "st")
    a("s_mov_b64 exec, -1")
    stamp()
    a.wait(vm="all")
    a("s_barrier")
    stamp()
    if stamps:
        pass
    a(f"s_cmp_lg_u32 {sWv}, 0")
    a("s_cbranch_scc1 L_end")
    a("v_mov_b32 v54, 1")
    a(f"s_lshl_b32 s3, {sMt}, 2")
    a(f"v_and_b32 v55, 7, {vL}")
    a(f"v_lshrrev_b32 v56, 3, {vL}")
    a("v_lshl_add_u32 v55, v55, 3, v56")
    a("v_lshlrev_b32 v55, 2, v55")
    a("s_mov_b64 exec, 1")
    a.vmem(f"buffer_atomic_add v54, off, {S_DBG}, s3 sc0", "at")
    a("s_mov_b64 exec, -1")
    a.wait(vm="all")
    a("v_readfirstlane_b32 s3, v54")
    a("s_cmp_lg_u32 s3, 3")
    a("s_cbranch_scc1 L_fin")
    for k in range(9):
        a.vmem(f"buffer_load_dword v{k}, v55, {S_WS}, s6 offen offset:{256*k} sc1", "ld")
    a(f"v_lshlrev_b32 v57, 16, v{BW+16}")
    a(f"v_lshlrev_b32 v58, 1, {vL}")
    a(f"s_lshl_b32 s3, {sMt}, 7")
    a.wait(vm="all")
    a("v_add_f32 v0, v0, v1"); a("v_add_f32 v2, v2, v3"); a("v_add_f32 v4, v4, v5"); a("v_add_f32 v6, v6, v7")
    a("v_add_f32 v0, v0, v2"); a("v_add_f32 v4, v4, v6"); a("v_add_f32 v0, v0, v4")
    a("v_cvt_pk_bf16_f32 v0, v0, v8")
    a(f"v_and_b32 v8, {sHi}, v0")
    a("v_lshlrev_b32 v0, 16, v0")
    a("v_add_f32 v0, v0, v57")
    a("v_cvt_pk_bf16_f32 v0, v0, v0")
    a("v_lshlrev_b32 v0, 16, v0")
    a("v_add_f32 v0, v0, v8")
    a("v_cvt_pk_bf16_f32 v0, v0, v0")
    a.vmem(f"buffer_store_short v0, v58, {S_OUT}, s3 offen", "o")
    a("L_fin:")
    if stamps:
        a("s_waitcnt vmcnt(0)")
        stamp()
        a(f"s_mul_i32 s3, s2, {8*nst[0]}")
        a(f"v_lshlrev_b32 v59, 2, {vL}")
        a(f"v_cmp_gt_u32 vcc, {2*nst[0]}, {vL}")
        a("s_and_saveexec_b64 s[4:5], vcc")
        a.vmem(f"buffer_store_dword {vStamp}, v59, {S_WS}, s3 offen", "sx")
    a("L_end:")
    body = a.finish()
    sys.stderr.write(f"instructions: {len(a.L)}  nop states inserted: {a.nops}  stamps: {nst[0]}\n")
    return header(256, 256, 163840) + body + footer(512, 256)


if __name__ == "__main__":
    out = sys.argv[1] if len(sys.argv) > 1 else "k.s"
    stamps = "--stamps" in sys.argv
    open(out, "w").write(gen(stamps=stamps))
```

```python
import re

NAME = "standalone__deep_cross_pnn__recsys_kernel"

HEADER_COMMENT = """; Kernarg layout for this problem (80 bytes, ptrs only, base s[0:1]):
;   offset  72: d_ws      268435456 bytes workspace (unspecified values whenever your kernel or launch list starts; a list's later launches find what earlier ones wrote)
; grid=ceil(out_elems/256), lds=0). Harness parses it; keep it on one line.
"""


def header(grid, block, lds):
    return HEADER_COMMENT + f"""; @launch grid=({grid},1,1) block=({block},1,1) lds={lds}
.amdgcn_target "amdgcn-amd-amdhsa--gfx950"
.text
.globl {NAME}
.p2align 8
.type {NAME},@function
{NAME}:
"""


def footer(vgpr=512, acc=256):
    return f"""
s_endpgm
.section .rodata,"a"
.p2align 6
.amdhsa_kernel {NAME}
  .amdhsa_next_free_vgpr {vgpr}
  .amdhsa_next_free_sgpr 102
  .amdhsa_accum_offset {acc}
  .amdhsa_group_segment_fixed_size 0
  .amdhsa_kernarg_size 80
  .amdhsa_user_sgpr_count 2
  .amdhsa_user_sgpr_kernarg_segment_ptr 1
  .amdhsa_system_sgpr_workgroup_id_x 1
.end_amdhsa_kernel
"""


REG_RE = re.compile(r"^([vas])(\d+)$|^([vas])\[(\d+):(\d+)\]$")
TRANS = ("v_exp_", "v_log_", "v_rcp_", "v_rsq_", "v_sqrt_", "v_sin_", "v_cos_")


def regs(tok):
    tok = tok.strip()
    if tok in ("vcc", "vcc_lo", "vcc_hi"):
        return {"vcc"}
    if tok in ("exec", "exec_lo", "exec_hi"):
        return {"exec"}
    if tok == "m0":
        return {"m0"}
    tok = tok.strip("|").lstrip("-").strip("|")
    m = REG_RE.match(tok)
    if not m:
        return set()
    if m.group(1):
        return {m.group(1) + m.group(2)}
    return {m.group(3) + str(i) for i in range(int(m.group(4)), int(m.group(5)) + 1)}


class Ins:
    __slots__ = ("text", "op", "kind", "wr", "rd", "srcC", "srcAB", "passes", "dpp", "trans", "lds_dma",
                 "wide_store", "lane_op", "permlane", "states", "dtuple", "ctuple")

    def __init__(self, text):
        self.text = text
        t = text.split(";")[0].strip()
        parts = t.split(None, 1)
        self.op = op = parts[0]
        rest = parts[1] if len(parts) > 1 else ""
        ops = [x.strip() for x in rest.split(",")] if rest else []
        mods = ""
        if ops:
            last = ops[-1].split(None, 1)
            if last:
                ops[-1] = last[0]
                mods = last[1] if len(last) > 1 else ""
        self.wr = set(); self.rd = set(); self.srcC = set(); self.srcAB = set()
        self.passes = 0; self.dpp = False; self.trans = False; self.lds_dma = False
        self.wide_store = set(); self.lane_op = False; self.permlane = False
        self.states = 1; self.dtuple = None; self.ctuple = None
        if op.endswith(":"):
            self.kind = "label"; self.states = 0
        elif op == "s_nop":
            self.kind = "nop"; self.states = int(ops[0], 0) + 1
        elif op.startswith("v_mfma"):
            self.kind = "mfma"
            self.passes = 8 if "32x32x16" in op else 4
            assert "32x32x16" in op or "16x16x32" in op
            self.wr = regs(ops[0]); self.srcAB = regs(ops[1]) | regs(ops[2]); self.srcC = regs(ops[3])
            self.rd = self.srcAB | self.srcC
            self.dtuple = ops[0]; self.ctuple = ops[3]
        elif op.startswith("v_"):
            self.kind = "valu"
            self.wr = regs(ops[0])
            for o in ops[1:]:
                self.rd |= regs(o)
            if op.startswith(("v_fmac", "v_writelane", "v_mac")) or "_dpp" in op:
                self.rd |= regs(ops[0])
            if op.startswith("v_permlane"):
                self.permlane = True
                self.wr |= regs(ops[1]); self.rd |= regs(ops[0])
            if op.startswith("v_cndmask") and len(ops) == 3:
                self.rd |= {"vcc"}
            if op.startswith(("v_add_co", "v_sub_co", "v_addc", "v_subb")):
                self.wr |= regs(ops[1])
            self.dpp = "_dpp" in op
            self.trans = op.startswith(TRANS)
            self.lane_op = op.startswith(("v_readlane", "v_readfirstlane"))
        elif op.startswith("ds_"):
            self.kind = "ds"
            if op.startswith(("ds_read", "ds_bpermute", "ds_permute", "ds_swizzle")):
                self.wr = regs(ops[0])
                for o in ops[1:]:
                    self.rd |= regs(o)
            else:
                for o in ops:
                    self.rd |= regs(o)
        elif op.startswith(("buffer_", "global_")):
            self.kind = "vmem"
            if " lds" in (" " + mods):
                self.lds_dma = True
                for o in ops:
                    self.rd |= regs(o)
                self.rd |= {"m0"}
            elif "load" in op:
                self.wr = regs(ops[0])
                for o in ops[1:]:
                    self.rd |= regs(o)
            else:
                for o in ops:
                    self.rd |= regs(o)
                if "atomic" in op and "sc0" in mods:
                    self.wr = regs(ops[0])
                if "x4" in op or "x3" in op:
                    self.wide_store = regs(ops[0])
        elif op.startswith("s_"):
            self.kind = "salu"
            if op.startswith(("s_waitcnt", "s_barrier", "s_cbranch", "s_branch", "s_endpgm", "s_cmp", "s_setprio",
                              "s_sleep")):
                for o in ops:
                    self.rd |= regs(o)
            else:
                self.wr = regs(ops[0]) if ops else set()
                for o in ops[1:]:
                    self.rd |= regs(o)
                if "saveexec" in op:
                    self.wr |= {"exec"}
        else:
            raise ValueError("unknown instruction: " + text)


def required_gap(p, c):
    need = 0
    if p.kind == "valu":
        vw = {r for r in p.wr if r[0] in "va" and r != "vcc"}
        sw = {r for r in p.wr if r[0] == "s" or r == "vcc"}
        if c.kind == "mfma" and vw & c.rd:
            need = max(need, 2)
        if c.kind == "valu":
            if c.dpp and vw & c.rd:
                need = max(need, 2)
            if c.permlane and vw & c.rd:
                need = max(need, 2)
            if c.lane_op and vw & c.rd:
                need = max(need, 1)
            if sw & c.rd:
                need = max(need, 4 if c.op.startswith(("v_readlane", "v_writelane")) else 2)
            if p.trans and not c.trans and vw & (c.rd | c.wr):
                need = max(need, 1)
            if p.trans and c.trans and vw & c.rd:
                need = max(need, 1)
        if c.kind == "vmem" and sw & c.rd:
            need = max(need, 5)
        if c.kind == "salu" and sw & c.rd:
            need = max(need, 1)
        assert "exec" not in p.wr, p.text
    if p.kind == "mfma":
        big = 12 if p.passes == 8 else 8
        if c.kind == "mfma":
            if p.wr & c.srcAB:
                need = max(need, big)
            if p.wr & (c.srcC | c.wr):
                if c.ctuple == p.dtuple and c.dtuple == p.dtuple and c.passes == p.passes:
                    pass
                else:
                    need = max(need, 10 if p.passes == 8 else 6)
        elif c.kind in ("valu", "ds", "vmem"):
            if p.wr & (c.rd | c.wr):
                need = max(need, big)
            if c.kind == "valu" and p.srcC & c.wr:
                need = max(need, 7 if p.passes == 8 else 3)
    if p.kind == "salu" and "m0" in p.wr and c.lds_dma:
        need = max(need, 1)
    if p.kind == "vmem" and p.wide_store and c.kind in ("valu", "ds", "vmem", "mfma") and p.wide_store & c.wr:
        need = max(need, 2)
    return need


class Asm:
    def __init__(self):
        self.L = []
        self.lg = []
        self.lg_done = 0
        self.vm = []
        self.vm_done = 0
        self.nops = 0
        self.max_lg = 0

    def raw(self, text):
        self.L.append(Ins(text))

    def __call__(self, text):
        ins = Ins(text)
        assert ins.kind not in ("ds", "vmem"), "use ds()/vmem(): " + text
        self.L.append(ins)

    def ds(self, text, tag=None):
        if getattr(self, "auto_lg", False) and len(self.lg) - self.lg_done >= 15:
            keep = 10
            self.L.append(Ins(f"s_waitcnt lgkmcnt({keep})")); self.lg_done = len(self.lg) - keep
            self.auto_waits = getattr(self, "auto_waits", 0) + 1
        self.L.append(Ins(text)); self.lg.append(tag)
        self.max_lg = max(self.max_lg, len(self.lg) - self.lg_done)
        assert len(self.lg) - self.lg_done <= 15, "more than 15 LDS ops outstanding at: " + text

    def vmem(self, text, tag=None):
        self.L.append(Ins(text)); self.vm.append(tag)
        assert len(self.vm) - self.vm_done <= 63, "vmcnt overflow at " + text

    @staticmethod
    def _need(lst, done, tags):
        if tags == "all":
            idx = len(lst)
        else:
            if isinstance(tags, str):
                tags = [tags]
            idx = 0
            for t in tags:
                found = [i for i, x in enumerate(lst) if x == t]
                assert found, f"tag {t} never issued"
                idx = max(idx, found[-1] + 1)
        return idx

    def wait(self, lg=None, vm=None):
        parts = []
        if vm is not None:
            idx = self._need(self.vm, self.vm_done, vm)
            if idx > self.vm_done:
                parts.append(f"vmcnt({len(self.vm) - idx})"); self.vm_done = idx
        if lg is not None:
            idx = self._need(self.lg, self.lg_done, lg)
            if idx > self.lg_done:
                parts.append(f"lgkmcnt({len(self.lg) - idx})"); self.lg_done = idx
        if parts:
            self.L.append(Ins("s_waitcnt " + " ".join(parts)))

    def wait_lg0(self):
        self.L.append(Ins("s_waitcnt lgkmcnt(0)")); self.lg_done = len(self.lg)

    def finish(self):
        out = []
        for ins in self.L:
            if ins.kind != "label":
                need = 0
                dist = 0
                for p in reversed(out):
                    if dist >= 12:
                        break
                    g = required_gap(p, ins)
                    if g > dist:
                        need = max(need, g - dist)
                    dist += p.states
                if need:
                    out.append(Ins(f"s_nop {need - 1}")); self.nops += need
            out.append(ins)
        return "\n".join(("" if i.kind == "label" else "    ") + i.text for i in out)
```

```python
import sys, struct
from asmlib import Asm, header, footer

NPOS = 25
STG = 16384
BOFF = 3 * STG
IDXO = 6 * STG
UREG = IDXO + 16384
RINGO = UREG + 20480
PIDX = RINGO + 20480
WPR = IDXO
RED = 2 * STG
LDSB = 163840
XB = 1 << 20
FLB = 16 << 20
fb = lambda x: hex(struct.unpack("<I", struct.pack("<f", x))[0])

def ACC(t): return f"v[{16*t}:{16*t+15}]"
def E(kk, mt): b = 64 + 16*kk + 4*mt; return f"v[{b}:{b+3}]"
def Wf(kk, nt): b = 72 + 16*kk + 4*nt; return f"v[{b}:{b+3}]"
def Wh(kk, nt, t): b = 72 + 16*kk + 4*nt + 2*t; return f"v[{b}:{b+1}]"
def PA(u, x): return f"v{144 + 2*(u & 1) + x}"
def vPR(var, h): return f"v{148 + 2*var + h}"
vPI1, vP6 = "v152", "v153"
WO = 156; WB = 184; IA = 188; B1F = 192; W2F = 208
vXS, vL16, vB2, vFl = "v224", "v225", "v226", "v227"
def vB(i): return f"v{228+i}"
vRdy, vOne = "v234", "v235"
vT2 = "v236"
vL, vChE, vChO = "v240", "v241", "v242"
def vA(kk): return f"v{244+kk}"
def vW(nt): return f"v{248+nt}"
vIB, vPI, vWD, vWT, vT, vStamp = "v250", "v251", "v252", "v253", "v254", "v255"
def FR(g, s, h): b = 32*g + 8*s + 4*h; return f"a[{b}:{b+3}]"
RING = 128; PACC = 184; DS3 = [64, 80, 96]
S_IDX, S_TAB, S_W1, S_WP = "s[16:19]", "s[20:23]", "s[24:27]", "s[28:31]"
S_B1, S_W2, S_WS, S_OUT, S_DBG, S_B2 = "s[32:35]", "s[36:39]", "s[40:43]", "s[44:47]", "s[48:51]", "s[52:55]"
sWv, sMt, sC, sKs, sN, sSel, sT, sU = "s56", "s57", "s58", "s59", "s60", "s61", "s62", "s63"
sStA, sStB, sBb, sSig, sBo, sWsel = "s68", "s69", "s70", "s71", "s72", "s73"
sGa, sGb, sOD, sOT, sKeep = "s74", "s75", "s76", "s77", "s78"
sHi, sW0 = "s79", "s[80:81]"
sM6, sMa, sMb = "s[82:83]", "s[84:85]", "s[86:87]"
sXS0, sXS1, sXL, sFP, sFC, sCnt = "s88", "s89", "s90", "s91", "s96", "s97"
sSigs = ["s71", "s92"]
sRing, sGot = "s93", "s94"
PAIRS = [(ga, gb) for gb in range(7) for ga in range(gb + 1)]


def gen(stamps=False, nodma=False, nocomp=False, lead=(6, 3, 0, 0), flagpair=6, noex=False, nopl=False,
        poll1=13, chk1=20, early=0, bs2=False, slp=0):
    ORD = [sorted(range(25), key=lambda f: (f - lead[(f - r) % 4], f)) for r in range(4)]
    a = Asm(); a.auto_lg = True
    nst = [0]

    def stamp():
        if stamps:
            a("s_memrealtime s[98:99]"); a("s_memtime s[100:101]"); a.wait_lg0()
            a(f"v_writelane_b32 {vStamp}, s98, {2*nst[0]}")
            a(f"v_writelane_b32 {vStamp}, s100, {2*nst[0]+1}")
            nst[0] += 1

    def emit(items):
        for it in items:
            if it[0] == "s": a(it[1])
            elif it[0] == "vm": a.vmem(it[1], it[2])
            elif it[0] == "ds": a.ds(it[1], it[2])
            elif it[0] == "wl": a.wait(lg=it[1])
            elif it[0] == "wv": a.wait(vm=it[1])
            else: raise ValueError(it)

    def srd(name, lo, hi, n):
        b = int(name[2:].split(":")[0])
        a(f"s_mov_b32 s{b}, {lo}"); a(f"s_mov_b32 s{b+1}, {hi}")
        a(f"s_mov_b32 s{b+2}, {n}"); a(f"s_mov_b32 s{b+3}, 0x20000")

    a("s_cmp_ge_u32 s2, 256"); a("s_cbranch_scc1 L_end")
    a("s_load_dwordx4 s[4:7], s[0:1], 0")
    a("s_load_dwordx4 s[8:11], s[0:1], 16")
    a("s_load_dwordx4 s[12:15], s[0:1], 32")
    a("s_load_dwordx4 s[92:95], s[0:1], 48")
    a("s_load_dwordx4 s[64:67], s[0:1], 64")
    if stamps: a("s_memrealtime s[98:99]"); a("s_memtime s[100:101]")
    a("v_lshrrev_b32 v1, 6, v0")
    a(f"v_and_b32 {vL}, 63, v0")
    a(f"v_readfirstlane_b32 {sWv}, v1")
    a("s_and_b32 s3, s2, 7")
    a(f"s_lshr_b32 {sT}, s2, 3")
    a(f"s_lshr_b32 {sU}, {sT}, 3")
    a(f"s_and_b32 {sC}, {sT}, 7")
    a(f"s_and_b32 {sN}, {sT}, 1")
    a(f"s_lshr_b32 {sKs}, {sC}, 1")
    a(f"s_lshl2_add_u32 {sMt}, s3, {sU}")
    a(f"s_lshl1_add_u32 {sSel}, {sN}, {sU}")
    a(f"s_and_b32 {sSel}, {sSel}, 3")
    a(f"s_lshl_b32 {sSel}, {sSel}, 3")
    a(f"s_or_b32 {sSel}, {sSel}, 0x80000")
    a(f"v_lshrrev_b32 v2, 3, {vL}")
    a(f"v_and_b32 v3, 7, {vL}")
    a("v_mul_u32_u24 v4, 400, v2")
    a("v_lshl_add_u32 v4, v3, 4, v4")
    a(f"s_mul_i32 s3, {sMt}, 51200")
    a(f"s_mul_i32 {sT}, {sWv}, 12800")
    a(f"s_mul_i32 {sU}, {sKs}, 100")
    a(f"s_add_u32 {sT}, {sT}, s3")
    a(f"s_add_u32 {sOD}, {sT}, {sU}")
    a(f"s_mul_i32 {sT}, {sC}, 6400")
    a(f"s_add_u32 s3, s3, {sT}")
    a(f"s_mul_i32 {sT}, {sWv}, 1600")
    a(f"s_add_u32 {sOT}, s3, {sT}")
    a(f"s_lshl_b32 {sStA}, {sWv}, 12")
    a(f"v_lshrrev_b32 v5, 2, {vL}")
    a("v_and_b32 v5, 4, v5")
    a("v_xor_b32 v5, v5, v3")
    a("v_lshlrev_b32 v6, 9, v2")
    a(f"v_lshl_add_u32 {vB(0)}, v5, 4, v6")
    for i in range(1, 4):
        a(f"v_add_u32 {vB(i)}, {3072*i}, {vB(0)}")
    a(f"s_and_b32 s3, {sWv}, 1")
    a(f"s_lshr_b32 {sT}, {sWv}, 1")
    a(f"s_lshl_b32 {sStB}, s3, 13")
    a(f"s_lshl_b32 {sU}, {sT}, 12")
    a(f"s_add_u32 {sStB}, {sStB}, {sU}")
    a(f"s_add_u32 {sStB}, {sStB}, {BOFF}")
    a(f"s_mul_i32 {sBb}, {sKs}, {25*32768}")
    a(f"s_lshl_b32 {sU}, {sT}, 14")
    a(f"s_add_u32 {sBb}, {sBb}, {sU}")
    a(f"s_lshl_b32 {sU}, {sN}, 8")
    a(f"s_add_u32 {sBb}, {sBb}, {sU}")
    a(f"s_lshl_b32 {sU}, s3, 7")
    a(f"s_add_u32 {sBb}, {sBb}, {sU}")
    a(f"v_lshlrev_b32 {vL16}, 4, {vL}")
    a.wait_lg0()
    srd(S_IDX, "s4", "s5", 1638400)
    for i in range(4):
        a(f"s_add_u32 m0, {sStA}, {IDXO + 1024*i}")
        if i: a(f"s_add_u32 {sOD}, {sOD}, 3200")
        a.vmem(f"buffer_load_dwordx4 v4, {S_IDX}, {sOD} offen lds", "idx")
    srd(S_W1, "s10", "s11", 3276800)

    def sig(p, dst=sSig):
        packed = sum(ORD[o][p] << (8*o) for o in range(4))
        return ("s", f"s_bfe_u32 {dst}, {hex(packed)}, {sSel}")

    def dmaB(p, sg=sSig):
        pre = [("s", f"s_lshl_b32 {sBo}, {sg}, 15"), ("s", f"s_add_u32 {sBo}, {sBo}, {sBb}"),
               ("s", f"s_add_u32 m0, {sStB}, {(p % 3)*STG}")]
        out = []
        for i in range(4):
            out.append((pre if i == 0 else []) +
                       [("vm", f"buffer_load_dwordx4 {vB(i)}, {S_W1}, {sBo} offen offset:{1024*i} lds", f"B{p}")])
        return out

    def idxrd(p, r=IA, sg=sSig):
        return [("s", f"v_lshl_add_u32 {vT}, {sg}, 2, {vIB}"),
                ("ds", f"ds_read2st64_b32 v[{r}:{r+1}], {vT} offset0:0 offset1:4", f"I{p}"),
                ("ds", f"ds_read2st64_b32 v[{r+2}:{r+3}], {vT} offset0:8 offset1:12", f"I{p}")]

    def dmaA(p, r=IA):
        out = []
        for i in range(4):
            out.append([("s", f"s_add_u32 m0, {sStA}, {(p % 3)*STG + 1024*i}"),
                        ("s", f"v_lshl_add_u32 v{r+i}, v{r+i}, 7, {vChO if i & 1 else vChE}"),
                        ("vm", f"buffer_load_dwordx4 v{r+i}, {S_TAB}, 0 offen lds", f"A{p}")])
        return out

    emit([sig(0, sGa)])
    for g in dmaB(0, sGa): emit(g)
    emit([sig(1, sGb)])
    for g in dmaB(1, sGb): emit(g)
    a(f"s_mul_i32 {sT}, {sWv}, 1600")
    a(f"s_add_u32 m0, {sT}, {PIDX}")
    srd(S_TAB, "s6", "s7", 12800000)
    for i in range(2):
        a.vmem(f"buffer_load_dwordx4 {vL16}, {S_IDX}, {sOT} offen offset:{1024*i} lds", "pidx")
    srd(S_WP, "s8", "s9", 20000)
    srd(S_B1, "s12", "s13", 512)
    srd(S_W2, "s14", "s15", 512)
    srd(S_B2, "s92", "s93", 2)
    srd(S_OUT, "s94", "s95", 8192)
    srd(S_DBG, "s64", "s65", 256)
    srd(S_WS, "s66", "s67", 32 << 20)
    if stamps:
        a(f"v_writelane_b32 {vStamp}, s98, 0"); a(f"v_writelane_b32 {vStamp}, s100, 1"); nst[0] = 1
    emit([sig(2, sKeep)])
    a(f"v_lshrrev_b32 v7, 4, {vL}")
    a("v_xor_b32 v8, v3, v7")
    a(f"v_lshlrev_b32 {vChE}, 4, v8")
    a(f"v_xor_b32 {vChO}, 64, {vChE}")
    a(f"s_add_u32 {sT}, {sStA}, {IDXO}")
    a(f"v_lshl_add_u32 {vIB}, v2, 7, {sT}")
    a(f"v_lshrrev_b32 v9, 5, {vL}")
    a(f"v_bfe_u32 v10, {vL}, 1, 3")
    a("v_xor_b32 v10, v10, v9")
    a("v_lshlrev_b32 v10, 4, v10")
    a(f"v_and_b32 v11, 31, {vL}")
    a("v_lshl_add_u32 v10, v11, 7, v10")
    a(f"s_lshr_b32 {sT}, {sWv}, 1")
    a(f"s_lshl_b32 {sT}, {sT}, 13")
    a(f"v_add_u32 {vA(0)}, {sT}, v10")
    for kk in range(1, 4):
        a(f"v_xor_b32 {vA(kk)}, {32*kk}, {vA(0)}")
    a(f"v_bfe_u32 v12, {vL}, 2, 2")
    a(f"v_and_b32 v13, 3, {vL}")
    a("v_lshl_add_u32 v14, v9, 3, v12")
    a("v_lshlrev_b32 v14, 7, v14")
    a("v_and_b32 v15, 1, v7")
    a("v_lshlrev_b32 v15, 1, v15")
    a("v_lshrrev_b32 v16, 1, v13")
    a("v_add_u32 v15, v15, v16")
    a("v_and_b32 v16, 2, v12")
    a("v_lshlrev_b32 v16, 1, v16")
    a("v_xor_b32 v15, v15, v16")
    a("v_lshl_add_u32 v14, v15, 4, v14")
    a("v_and_b32 v16, 1, v13")
    a("v_lshl_add_u32 v14, v16, 3, v14")
    a(f"s_and_b32 s3, {sWv}, 1")
    a(f"s_lshl_b32 s3, s3, 13")
    a(f"s_add_u32 s3, s3, {BOFF}")
    a(f"v_add_u32 {vW(0)}, s3, v14")
    a(f"v_xor_b32 {vW(1)}, 64, {vW(0)}")
    a.wait(vm="idx")
    stamp()
    T0 = 20
    emit(idxrd(0, T0, sGa)); emit(idxrd(1, T0 + 4, sGb)); emit(idxrd(2, T0 + 8, sKeep))
    a("v_lshrrev_b32 v17, 2, v2")
    a("v_and_b32 v18, 3, v2")
    a("v_mul_u32_u24 v19, 100, v17")
    a("v_lshl_add_u32 v19, v18, 2, v19")
    a(f"s_mul_i32 {sT}, {sWv}, 1600")
    a(f"s_add_u32 {sT}, {sT}, {PIDX}")
    a(f"v_add_u32 {vPI}, {sT}, v19")
    a(f"v_add_u32 {vPI1}, 800, {vPI}")
    a("v_mul_u32_u24 v19, 400, v17")
    a("v_mul_u32_u24 v18, 100, v18")
    a(f"s_add_u32 {sT}, {sT}, 96")
    a(f"v_add3_u32 {vP6}, v19, v18, {sT}")
    a(f"s_mul_i32 {sRing}, {sWv}, 5120")
    a(f"s_add_u32 {sRing}, {sRing}, {RINGO}")

    def pidxrd(u):
        b = 144 + 2*(u & 1)
        if u == 24:
            return [("ds", f"ds_read2_b32 v[{b}:{b+1}], {vP6} offset0:0 offset1:200", f"PI{u}")]
        g, s_ = u >> 2, u & 3
        o = 100*(s_ & 1) + 4*g
        return [("ds", f"ds_read2_b32 v[{b}:{b+1}], {vPI1 if s_ >= 2 else vPI} offset0:{o} offset1:{o+50}", f"PI{u}")]

    def pdma(u, x):
        n = 2*u + x
        return [("s", f"s_add_u32 m0, {sRing}, {(n % 5)*1024}"),
                ("s", f"v_lshl_add_u32 {PA(u,x)}, {PA(u,x)}, 7, {vChO if x else vChE}"),
                ("vm", f"buffer_load_dwordx4 {PA(u,x)}, {S_TAB}, 0 offen lds", f"P{u}")]

    def prd(u):
        g, s_ = u >> 2, u & 3
        b = (2*u) % 5
        return [("ds", f"ds_read_b128 {FR(g,s_,h)}, {vPR(1 if b == 4 else 0, h)} offset:{b*1024}", f"PR{u}")
                for h in range(2)]

    a.wait(lg="I0")
    for g in dmaA(0, T0): emit(g)
    a.wait(lg="I1")
    for g in dmaA(1, T0 + 4): emit(g)
    if not nopl:
        a.wait(vm="pidx")
        emit(pidxrd(0))
    if not early:
        for g in dmaB(2, sKeep): emit(g)
    a.wait(lg="all")
    if not nopl:
        emit(pdma(0, 0)); emit(pdma(0, 1))
    for g in dmaA(2, T0 + 8): emit(g)
    a(f"s_mul_i32 {sT}, {sWv}, 5120")
    a(f"s_add_u32 m0, {sT}, {UREG}")
    a(f"s_add_u32 {sU}, {sT}, 4096")
    for i in range(4):
        a.vmem(f"buffer_load_dwordx4 {vL16}, {S_WP}, {sT} offen offset:{1024*i} lds", "wp")
    a(f"s_add_u32 m0, {sT}, {UREG + 4096}")
    a(f"s_cmp_eq_u32 {sWv}, 0")
    a(f"s_cselect_b64 {sW0}, 1, 0")
    a.vmem(f"buffer_load_dwordx4 {vL16}, {S_WP}, {sU} offen lds", "wp")
    for i in range(4):
        a(f"v_mov_b32 v{WB+i}, 0")
    a(f"s_lshl3_add_u32 {sFC}, {sMt}, {sC}")
    a(f"s_lshl_b32 {sXL}, {sFC}, 15")
    a(f"s_lshl_b32 {sFC}, {sFC}, 7")
    a(f"s_add_u32 {sFC}, {sFC}, {FLB}")
    a(f"s_cmp_eq_u32 {sWv}, 0")
    a(f"s_cselect_b64 exec, 15, 0")
    a.vmem(f"buffer_store_dwordx4 v[{WB}:{WB+3}], {vL16}, {S_WS}, {sFC} offen sc1", "clr")
    a("s_mov_b64 exec, -1")
    a("v_lshrrev_b32 v18, 1, v7")
    a("v_lshlrev_b32 v18, 6, v18")
    a("v_and_b32 v19, 1, v7")
    a("v_lshl_add_u32 v18, v19, 3, v18")
    a(f"s_lshl_b32 {sT}, {sWv}, 7")
    for r in range(4):
        a.vmem(f"buffer_load_dwordx2 v[{B1F+8+2*r}:{B1F+9+2*r}], v18, {S_B1}, {sT} offen offset:{16*r}", "bw")
    for r in range(4):
        a.vmem(f"buffer_load_dwordx2 v[{W2F+8+2*r}:{W2F+9+2*r}], v18, {S_W2}, {sT} offen offset:{16*r}", "bw")
    a.vmem(f"buffer_load_ushort {vB2}, off, {S_B2}, 0", "bw")
    a(f"v_and_b32 v19, 15, {vL}")
    a(f"v_bfe_u32 v32, {vL}, 1, 3")
    a("v_xor_b32 v32, v32, v7")
    a("v_lshlrev_b32 v32, 4, v32")
    a("v_lshl_add_u32 v32, v19, 7, v32")
    a(f"v_add_u32 {vPR(0,0)}, {sRing}, v32")
    a(f"v_xor_b32 {vPR(0,1)}, 64, {vPR(0,0)}")
    a("v_lshrrev_b32 v19, 3, v19")
    a("v_mul_u32_u24 v19, 5120, v19")
    a(f"v_sub_u32 {vPR(1,0)}, {vPR(0,0)}, v19")
    a(f"v_sub_u32 {vPR(1,1)}, {vPR(0,1)}, v19")
    a("v_mul_u32_u24 v19, 5000, v7")
    a("v_mul_u32_u24 v32, 50, v12")
    a("v_lshl_add_u32 v32, v13, 1, v32")
    a(f"s_mov_b32 s3, {UREG}")
    a(f"v_add3_u32 {vWD}, v19, v32, s3")
    a("v_mul_u32_u24 v19, 5000, v12")
    a("v_mul_u32_u24 v32, 200, v13")
    a("v_mul_u32_u24 v33, 50, v7")
    a("v_add3_u32 v19, v19, v32, v33")
    a(f"v_add_u32 {vWT}, s3, v19")
    a(f"s_lshl_b32 {sWsel}, {sWv}, 3")
    a(f"s_or_b32 {sWsel}, {sWsel}, 0x80000")
    a(f"s_mov_b32 {sHi}, 0xffff0000")
    a("s_mov_b32 s82, 0x11111111"); a("s_mov_b32 s83, 0x11111111")
    a(f"v_mov_b32 {vOne}, 1")
    for i in range(28):
        a(f"v_mov_b32 v{WO+i}, 0")
    a(f"v_bfe_u32 v19, {vL}, 4, 1")
    a("v_lshlrev_b32 v19, 15, v19")
    a("v_lshl_add_u32 v19, v9, 8, v19")
    a(f"v_and_b32 v32, 15, {vL}")
    a(f"v_lshl_add_u32 {vXS}, v32, 4, v19")
    a(f"v_lshlrev_b32 {vFl}, 7, {vL}")
    a(f"s_lshr_b32 {sT}, {sWv}, 1")
    a(f"s_lshl_b32 s3, {sMt}, 3")
    a(f"s_lshl2_add_u32 s3, {sT}, s3")
    a(f"s_and_b32 {sT}, {sWv}, 1")
    a(f"s_lshl1_add_u32 {sT}, {sN}, {sT}")
    a(f"s_lshl2_add_u32 {sT}, {sT}, {sKs}")
    a(f"s_lshl_b32 {sXS0}, s3, 15")
    a(f"s_lshl_b32 {sU}, {sT}, 11")
    a(f"s_add_u32 {sXS0}, {sXS0}, {sU}")
    a(f"s_add_u32 {sXS0}, {sXS0}, {XB}")
    a(f"s_add_u32 {sXS1}, {sXS0}, 65536")
    a(f"s_lshl_b32 {sFP}, s3, 7")
    a(f"s_lshl2_add_u32 {sFP}, {sT}, {sFP}")
    a(f"s_add_u32 {sFP}, {sFP}, {FLB}")
    a(f"s_lshl_b32 {sU}, {sWv}, 13")
    a(f"s_add_u32 {sXL}, {sXL}, {sU}")
    a(f"s_add_u32 {sXL}, {sXL}, {XB}")
    a(f"s_lshl4_add_u32 {sFC}, {sWv}, {sFC}")

    def reads(p, kk):
        sb = (p % 3) * STG
        tag = f"R{p}_{kk}"
        r = []
        for x in range(2):
            r.append(("ds", f"ds_read_b128 {E(kk,x)}, {vA(kk)} offset:{sb + x*4096}", tag))
            for t in range(2):
                r.append(("ds", f"ds_read_b64_tr_b16 {Wh(kk,x,t)}, {vW(x)} offset:{sb + kk*2048 + t*512}", tag))
        return r

    def deep(p, kk, tau):
        nt, mt = tau >> 1, tau & 1
        c = "0" if (p == 0 and kk == 0) else ACC(tau)
        return ("s", f"v_mfma_f32_32x32x16_bf16 {ACC(tau)}, {Wf(kk,nt)}, {E(kk,mt)}, {c}")

    extra = {p: [] for p in range(NPOS)}
    post = {p: [] for p in range(NPOS)}
    for t in range(7):
        p = 3 + t
        packed = 0
        for w in range(4):
            ga, gb = PAIRS[4*t + w]
            packed |= (ga | gb << 3 | (ga != gb) << 6) << (8*w)
        x = [("s", f"s_bfe_u32 {sOD}, {hex(packed)}, {sWsel}"),
             ("s", f"s_and_b32 {sGa}, {sOD}, 7"), ("s", f"s_bfe_u32 {sGb}, {sOD}, 0x30003"),
             ("s", f"s_bitcmp1_b32 {sOD}, 6"), ("s", f"s_cselect_b32 {sKeep}, 1.0, 0"),
             ("s", f"s_mul_i32 {sOD}, {sGa}, 800"), ("s", f"s_mul_i32 {sOT}, {sGb}, 800"),
             ("s", f"s_lshl3_add_u32 {sOD}, {sGb}, {sOD}"), ("s", f"s_lshl3_add_u32 {sOT}, {sGa}, {sOT}"),
             ("s", f"v_add_u32 {vT2}, {sOD}, {vWD}")]
        for e in range(4):
            x.append(("ds", f"ds_read_u16_d16_hi v{WO+4*t+e}, {vT2} offset:{200*e}", f"WR{t}"))
        x.append(("s", f"v_add_u32 {vT2}, {sOT}, {vWT}"))
        for e in range(4):
            x.append(("ds", f"ds_read_u16_d16_hi v{WB+e}, {vT2} offset:{2*e}", f"WR{t}"))
        extra[p] += x
        y = [("s", f"v_fma_f32 v{WO+4*t+e}, v{WB+e}, {sKeep}, v{WO+4*t+e}") for e in range(4)]
        if t == 5:
            y = [("s", f"s_cmp_eq_u32 {sWv}, 0"), ("s", f"s_cselect_b64 {sMa}, -1, {sM6}")] + y
            y += [("s", f"v_cndmask_b32 v{WO+4*t+e}, 0, v{WO+4*t+e}, {sMa}") for e in range(4)]
        if t == 6:
            y = [("s", f"s_cmp_eq_u32 {sWv}, 3"), ("s", f"s_cselect_b64 {sMb}, 0, {sM6}")] + y
            y += [("s", f"v_cndmask_b32 v{WO+4*t+e}, 0, v{WO+4*t+e}, {sM6 if e == 0 else sMb}") for e in range(4)]
        post[p] += y
    post[21].append(("s", f"s_lshl_b32 {sT}, {sWv}, 10"))
    post[21].append(("s", f"s_add_u32 {sT}, {sT}, {WPR}"))
    post[21].append(("s", f"v_add_u32 {vT2}, {sT}, {vL16}"))
    for t in range(7):
        (post[21] if t < 2 else extra[22] if t < 5 else post[22]).append(
            ("ds", f"ds_write_b128 {vT2}, v[{WO+4*t}:{WO+4*t+3}] offset:{4096*t}", "WW"))
    extra[23].append(("s", f"v_add_u32 {vT2}, {WPR}, {vL16}"))
    for base, p in ((B1F, 13), (W2F, 14)):
        for r in range(8):
            extra[p].append(("s", f"v_lshlrev_b32 v{base+2*r}, 16, v{base+8+r}"))
            extra[p].append(("s", f"v_and_b32 v{base+2*r+1}, {sHi}, v{base+8+r}"))
    extra[15].append(("s", f"v_lshlrev_b32 {vB2}, 16, {vB2}"))

    def ring(P):
        b = RING + 4*(P % 4)
        return ("ds", f"ds_read_b128 v[{b}:{b+3}], {vT2} offset:{1024*P}", f"RG{P}")

    def spread(groups, n):
        out = [[] for _ in range(n)]
        k = len(groups)
        for i, g in enumerate(groups):
            out[min(n - 1, (i * n) // max(k, 1))] += g
        return out

    a.wait(vm=["A0", "B0"])
    a("s_barrier")
    stamp()
    if not nocomp:
        emit(reads(0, 0)); emit(reads(0, 1))

    for p in range(NPOS):
        q = p + 3
        usep = not nodma and not nopl
        y = reads(p, 2) + reads(p, 3)
        if nocomp: y = []
        G = [[] for _ in range(8)]
        if q < NPOS: G[0] += [sig(q, sSigs[q & 1])] + idxrd(q, sg=sSigs[q & 1])
        if usep and p + 1 <= 24: G[0] += pidxrd(p + 1)
        for i in range(6): G[i+1 if i < 3 else i+1] += y[2*i:2*i+2]
        vg = []
        if usep and p >= 1: vg.append(pdma(p, 1))
        if not nodma and not bs2 and 3 <= p + 2 < NPOS: vg += dmaB(p + 2, sSigs[p & 1])
        V = spread(vg, 7)
        for i in range(7): G[i+1] += V[i]
        per = spread([[e] for e in extra[p]], 8)
        for i in range(8): G[i] += per[i]
        for i in range(8):
            kk, tau = i >> 2, i & 3
            if not nocomp:
                if tau == 0: a.wait(lg=f"R{p}_{kk}")
                emit([deep(p, kk, tau)])
            elif i == 0: a.wait(lg="all")
            emit(G[i])
        a.wait(lg="all")
        wt = []
        if p + 1 < NPOS and (not nodma or p + 1 < 3): wt += [f"A{p+1}", f"B{p+1}"]
        if usep and p >= 1: wt.append(f"P{p-1}")
        if wt: a.wait(vm=wt)
        if p + 1 < NPOS: a("s_barrier")
        if p in (0, 4, 8, 12, 16, 20, 22, 23): stamp()
        vg = []
        if usep and p + 1 <= 24: vg.append(pdma(p + 1, 0))
        if q < NPOS and not nodma:
            vg += dmaA(q)
            if bs2: vg += dmaB(q, sSigs[q & 1])
        if p == 2:
            vg.append([("s", f"s_lshl_b32 {sT}, {sMt}, 2"), ("s", f"s_mov_b64 exec, {sW0}"),
                       ("vm", f"buffer_atomic_add {vOne}, off, {S_DBG}, {sT} sc1", "rdy"),
                       ("s", "s_mov_b64 exec, -1")])
        if p == 14:
            vg.append([("s", f"s_lshl_b32 {sT}, {sMt}, 2"), ("s", f"s_mov_b64 exec, {sW0}"),
                       ("vm", f"buffer_load_dword {vRdy}, off, {S_DBG}, {sT} sc1", "rchk"),
                       ("s", "s_mov_b64 exec, -1")])
        V = spread(vg, 8)
        x = prd(p - 1) if (usep and p >= 1) else []
        x = x + [None] * (2 - len(x))
        x += (reads(p + 1, 0) + reads(p + 1, 1)) if (p + 1 < NPOS and not nocomp) else []
        if p == NPOS - 1: x += [ring(P) for P in range(3)]
        po = spread([[e] for e in post[p]], 4)
        for i in range(8):
            kk, tau = 2 + (i >> 2), i & 3
            if not nocomp: emit([deep(p, kk, tau)])
            emit([z for z in x[2*i:2*i+2] if z])
            emit(V[i])
            if i >= 4: emit(po[i-4])
        if p == 18:
            a.wait(vm="rchk")
            a(f"s_cmp_lg_u32 {sWv}, 0"); a("s_cbranch_scc1 L_rdy")
            a(f"s_mov_b32 {sCnt}, 0x10000")
            a(f"s_lshl_b32 {sT}, {sMt}, 2")
            a("L_rloop:")
            a(f"v_readfirstlane_b32 {sU}, {vRdy}")
            a(f"s_cmp_ge_u32 {sU}, 8"); a("s_cbranch_scc1 L_rdy")
            a(f"s_sub_u32 {sCnt}, {sCnt}, 1"); a("s_cbranch_scc1 L_rdy")
            a("s_sleep 4")
            a.raw(f"buffer_load_dword {vRdy}, off, {S_DBG}, {sT} sc1")
            a("s_waitcnt vmcnt(0)")
            a("s_branch L_rloop")
            a("L_rdy:")
    stamp()
    for tau in range(4):
        nt, mt = tau >> 1, tau & 1
        for i in range(8):
            a(f"v_cvt_pk_bf16_f32 v{16*tau+i}, v{16*tau+2*i}, v{16*tau+2*i+1}")
            if i in (3, 7) and not noex:
                qd = i >> 2
                a.vmem(f"buffer_store_dwordx4 v[{16*tau+4*qd}:{16*tau+4*qd+3}], {vXS}, {S_WS}, {sXS1 if mt else sXS0} "
                       f"offen offset:{1024*qd + 512*nt} sc1", "xs")
    for i in range(8):
        a(f"v_mov_b32 v{PACC+i}, 0")
    a(f"v_bfe_u32 v144, {vL}, 3, 1")
    a(f"v_lshrrev_b32 v145, 4, {vL}")
    a("v_xor_b32 v144, v144, v145")
    a(f"v_bfe_u32 v145, {vL}, 2, 2")
    a("v_lshlrev_b32 v145, 7, v145")
    a("v_lshl_add_u32 v144, v144, 4, v145")
    a(f"v_add_u32 v144, {sRing}, v144")
    for k in range(1, 4):
        a(f"v_xor_b32 v{144+k}, {32*k}, v144")
    a(f"s_mov_b32 {sGot}, 0")
    a(f"s_add_u32 {sU}, {sXL}, 4096")
    stamp()

    def xloads(raw):
        for ks in range(4):
            for u in range(2):
                b = 16*ks + 8 + 4*u
                t = (f"buffer_load_dwordx4 v[{b}:{b+3}], {vL16}, {S_WS}, {sU if ks >= 2 else sXL} offen "
                     f"offset:{2048*(ks & 1) + 1024*u} sc1")
                if raw: a.raw(t)
                else: a.vmem(t, f"xl{ks}")

    def check(b):
        a(f"v_and_b32 v{b}, v{b}, v{b+1}"); a(f"v_and_b32 v{b+2}, v{b+2}, v{b+3}"); a(f"v_and_b32 v{b}, v{b}, v{b+2}")
        a(f"v_cmp_eq_u32 vcc, 1, v{b}")
    def fmas(P):
        d = DS3[P % 3]; w = RING + 4*(P % 4)
        return [f"v_fmac_f32 v{PACC+2*s+(e&1)}, v{d+4*s+e}, v{w+e}" for s in range(4) for e in range(4)]
    for P, (ga, gb) in enumerate(PAIRS):
        if P == 21: a.wait(lg="PR24")
        d = DS3[P % 3]
        fm = fmas(P - 1) if P else []
        if P: a.wait(lg=f"RG{P-1}")
        k = 0
        for h in range(2):
            for s in range(4):
                dd = f"v[{d+4*s}:{d+4*s+3}]"
                a(f"v_mfma_f32_16x16x32_bf16 {dd}, {FR(ga,s,h)}, {FR(gb,s,h)}, {'0' if h == 0 else dd}")
                for x in fm[2*k:2*k+2]: a(x)
                k += 1
        if P + 3 < 28: emit([ring(P + 3)])
        if P == flagpair and not noex:
            a.wait(vm="xs")
            a("s_mov_b64 exec, 15")
            a.vmem(f"buffer_store_dword {vOne}, {vFl}, {S_WS}, {sFP} offen sc1", "fl")
            a("s_mov_b64 exec, -1")
            stamp()
        if P in (flagpair + 1, flagpair + 2):
            if not nodma and not nopl: a.wait(vm="P24")
            for s_ in range(2*(P - flagpair - 1), 2*(P - flagpair)):
                for h in range(2):
                    a.ds(f"ds_read_b128 {FR(6,s_,h)}, v{144 + (s_ ^ (2*h))} offset:{3072 + 512*s_}", "PR24")
        if P == poll1 and not noex:
            a.vmem(f"buffer_load_dwordx4 v[112:115], off, {S_WS}, {sFC} sc1", "pl1")
        if P == chk1 and not noex:
            a.wait(vm="pl1")
            check(112)
            a("s_cbranch_vccz L_late")
            xloads(True)
            a(f"s_mov_b32 {sGot}, 1")
            a("L_late:")
    a.wait(lg="RG27")
    for x in fmas(27): a(x)
    for s in range(4):
        a(f"v_add_f32 v{PACC+2*s}, v{PACC+2*s}, v{PACC+2*s+1}")
    a(f"v_lshrrev_b32 v148, 5, {vL}")
    a(f"s_lshl_b32 {sT}, {sWv}, 9")
    a(f"s_add_u32 {sT}, {sT}, {RED + 64}")
    a(f"v_permlane32_swap_b32 v{PACC}, v{PACC+2}")
    a(f"v_permlane32_swap_b32 v{PACC+4}, v{PACC+6}")
    a(f"v_lshl_add_u32 v148, v148, 7, {sT}")
    a(f"v_add_f32 v{PACC}, v{PACC}, v{PACC+2}")
    a(f"v_add_f32 v{PACC+4}, v{PACC+4}, v{PACC+6}")
    for sh in (1, 2, 4, 8):
        for r in (PACC, PACC+4):
            a(f"v_add_f32_dpp v{r}, v{r}, v{r} row_shr:{sh} row_mask:0xf bank_mask:0xf bound_ctrl:0")
    for r in (PACC, PACC+4):
        a(f"v_add_f32_dpp v{r}, v{r}, v{r} row_bcast:15 row_mask:0xa bank_mask:0xf")
    a("s_mov_b32 exec_lo, 0x80000000"); a("s_mov_b32 exec_hi, 0x80000000")
    a.ds(f"ds_write_b32 v148, v{PACC}", "pw")
    a.ds(f"ds_write_b32 v148, v{PACC+4} offset:256", "pw")
    a("s_mov_b64 exec, -1")
    stamp()
    K1 = -2.0 * 1.4426950408889634 * 0.7978845608028654
    K2 = K1 * 0.044715
    a(f"s_mov_b32 s4, {fb(K2)}"); a(f"s_mov_b32 s5, {fb(K2)}")
    if not noex:
        a(f"s_cmp_lg_u32 {sGot}, 0"); a("s_cbranch_scc1 L_have")
        a(f"s_mov_b32 {sCnt}, 0x10000")
        a.raw(f"buffer_load_dwordx4 v[112:115], off, {S_WS}, {sFC} sc1")
        if slp: a(f"s_sleep {slp}")
        a("L_poll:")
        a.raw(f"buffer_load_dwordx4 v[116:119], off, {S_WS}, {sFC} sc1")
        a("s_waitcnt vmcnt(1)")
        check(112)
        a("s_cbranch_vccnz L_go")
        a.raw(f"buffer_load_dwordx4 v[112:115], off, {S_WS}, {sFC} sc1")
        a("s_waitcnt vmcnt(1)")
        check(116)
        a("s_cbranch_vccnz L_go")
        a(f"s_sub_u32 {sCnt}, {sCnt}, 1"); a("s_cbranch_scc0 L_poll")
        a("L_go:")
        xloads(True)
        a("L_have:")
        a.vm_done = len(a.vm)
        for ks in range(4):
            a.vm += [f"xl{ks}"] * 2
    else:
        xloads(False)
    stamp()
    a(f"v_mov_b32 v144, {fb(K1)}"); a(f"v_mov_b32 v145, {fb(K1)}")
    a(f"v_and_b32 v146, 15, {vL}")
    a(f"v_lshrrev_b32 v147, 4, {vL}")
    a("v_lshlrev_b32 v146, 7, v146")
    a("v_lshl_add_u32 v146, v147, 2, v146")
    a(f"s_lshl_b32 {sT}, {sWv}, 4")
    a(f"s_add_u32 {sT}, {sT}, {RED}")
    a(f"v_add_u32 v146, {sT}, v146")
    a(f"v_lshrrev_b32 v147, 2, {vL}")
    a(f"v_and_b32 v148, 3, {vL}")
    a("v_lshlrev_b32 v149, 7, v147")
    a(f"v_add_u32 v149, {RED}, v149")
    a("v_lshl_add_u32 v148, v148, 4, v149")
    a("v_lshlrev_b32 v147, 1, v147")
    X = B1F; T = 64; U = 80
    for ks in range(4):
        a.wait(vm=f"xl{ks}")
        for r in range(8):
            src = 16*ks + 8 + r
            a(f"v_lshlrev_b32 v{U+2*r}, 16, v{src}")
            a(f"v_and_b32 v{U+2*r+1}, {sHi}, v{src}")
        for r in range(8):
            a(f"v_pk_add_f32 v[{X+2*r}:{X+2*r+1}], v[{X+2*r}:{X+2*r+1}], v[{U+2*r}:{U+2*r+1}]")
    stamp()
    for r in range(0, 16, 2):
        a(f"v_pk_mul_f32 v[{T+r}:{T+r+1}], v[{X+r}:{X+r+1}], v[{X+r}:{X+r+1}]")
    for r in range(0, 16, 2):
        a(f"v_pk_fma_f32 v[{T+r}:{T+r+1}], v[{T+r}:{T+r+1}], s[4:5], v[144:145]")
    for r in range(0, 16, 2):
        a(f"v_pk_mul_f32 v[{T+r}:{T+r+1}], v[{T+r}:{T+r+1}], v[{X+r}:{X+r+1}]")
    for r in range(16):
        a(f"v_exp_f32 v{T+r}, v{T+r}")
    for r in range(0, 16, 2):
        a(f"v_pk_add_f32 v[{T+r}:{T+r+1}], v[{T+r}:{T+r+1}], 1.0 op_sel_hi:[1,0]")
    for r in range(16):
        a(f"v_rcp_f32 v{T+r}, v{T+r}")
    for r in range(0, 16, 2):
        a(f"v_pk_mul_f32 v[{X+r}:{X+r+1}], v[{X+r}:{X+r+1}], v[{W2F+r}:{W2F+r+1}]")
    a(f"v_pk_mul_f32 v[120:121], v[{X}:{X+1}], v[{T}:{T+1}]")
    a(f"v_pk_mul_f32 v[122:123], v[{X+2}:{X+3}], v[{T+2}:{T+3}]")
    for r in range(4, 16, 4):
        a(f"v_pk_fma_f32 v[120:121], v[{X+r}:{X+r+1}], v[{T+r}:{T+r+1}], v[120:121]")
        a(f"v_pk_fma_f32 v[122:123], v[{X+r+2}:{X+r+3}], v[{T+r+2}:{T+r+3}], v[122:123]")
    a("v_pk_add_f32 v[120:121], v[120:121], v[122:123]")
    a("v_add_f32 v120, v120, v121")
    a.ds("ds_write_b32 v146, v120", "dw")
    a.wait(lg="all")
    a("s_barrier")
    a(f"s_cmp_lg_u32 {sWv}, 0"); a("s_cbranch_scc1 L_end")
    a.ds("ds_read_b128 v[124:127], v148", "fr")
    a.ds("ds_read_b32 v150, v149 offset:64", "fr")
    a(f"s_lshl3_add_u32 s3, {sMt}, {sC}")
    a("s_lshl_b32 s3, s3, 5")
    a.wait(lg="all")
    a("v_add_f32 v124, v124, v125"); a("v_add_f32 v126, v126, v127"); a("v_add_f32 v124, v124, v126")
    a("v_add_f32_dpp v124, v124, v124 quad_perm:[1,0,3,2] row_mask:0xf bank_mask:0xf")
    a("v_add_f32_dpp v124, v124, v124 quad_perm:[2,3,0,1] row_mask:0xf bank_mask:0xf")
    a("v_cvt_pk_bf16_f32 v124, v124, v150")
    a(f"v_and_b32 v150, {sHi}, v124")
    a("v_lshlrev_b32 v124, 16, v124")
    a(f"v_add_f32 v124, v124, {vB2}")
    a("v_cvt_pk_bf16_f32 v124, v124, v124")
    a("v_lshlrev_b32 v124, 16, v124")
    a("v_add_f32 v124, v124, v150")
    a("v_cvt_pk_bf16_f32 v124, v124, v124")
    a(f"s_mov_b64 exec, {sM6}")
    a.vmem(f"buffer_store_short v124, v147, {S_OUT}, s3 offen", "o")
    if stamps:
        a("s_mov_b64 exec, -1")
        a("s_waitcnt vmcnt(0)")
        stamp()
        a(f"s_mul_i32 s3, s2, {8*nst[0]}")
        a(f"v_lshlrev_b32 v59, 2, {vL}")
        a(f"v_cmp_gt_u32 vcc, {2*nst[0]}, {vL}")
        a("s_and_saveexec_b64 s[4:5], vcc")
        a.vmem(f"buffer_store_dword {vStamp}, v59, {S_WS}, s3 offen", "sx")
    a("L_end:")
    body = a.finish()
    sys.stderr.write(f"instructions: {len(a.L)} nops: {a.nops} stamps: {nst[0]} autowaits: {getattr(a,'auto_waits',0)}\n")
    return header(256, 256, LDSB) + body + footer(512, 256)


if __name__ == "__main__":
    out = sys.argv[1]
    kw = {}
    for x in sys.argv[2:]:
        k, _, v = x.lstrip("-").partition("=")
        kw[k] = eval(v) if v else True
    open(out, "w").write(gen(**kw))
```

```python
import sys
NAME = "standalone__deep_cross_pnn__recsys_kernel"

def header(grid, block, lds):
    return f"""; @launch grid=({grid},1,1) block=({block},1,1) lds={lds}
.amdgcn_target "amdgcn-amd-amdhsa--gfx950"
.text
.globl {NAME}
.p2align 8
.type {NAME},@function
{NAME}:
"""
def footer(vgpr=512, acc=256):
    return f"""
s_endpgm
.section .rodata,"a"
.p2align 6
.amdhsa_kernel {NAME}
  .amdhsa_next_free_vgpr {vgpr}
  .amdhsa_next_free_sgpr 102
  .amdhsa_accum_offset {acc}
  .amdhsa_group_segment_fixed_size 0
  .amdhsa_kernarg_size 80
  .amdhsa_user_sgpr_count 2
  .amdhsa_user_sgpr_kernarg_segment_ptr 1
  .amdhsa_system_sgpr_workgroup_id_x 1
.end_amdhsa_kernel
"""

def gen(mode, depth, doA=True, doB=True, xcdmap=True, ntB=False):
    L = []
    a = L.append
    a("s_cmp_ge_u32 s2, 256")
    a("s_cbranch_scc1 L_end")
    a("s_memrealtime s[60:61]")
    a("s_load_dwordx4 s[4:7], s[0:1], 0")
    a("s_load_dwordx2 s[8:9], s[0:1], 24")
    a("s_load_dwordx2 s[10:11], s[0:1], 72")
    if xcdmap:
        a("s_and_b32 s12, s2, 7")
        a("s_lshr_b32 s13, s2, 3")
        a("s_lshr_b32 s14, s13, 2")
        a("s_lshl_b32 s12, s12, 3")
        a("s_add_u32 s12, s12, s14")
        a("s_and_b32 s13, s13, 3")
    else:
        a("s_lshr_b32 s12, s2, 2")
        a("s_and_b32 s13, s2, 3")
    a("v_lshrrev_b32 v1, 6, v0")
    a("v_and_b32 v2, 63, v0")
    a("s_nop 0")
    a("v_readfirstlane_b32 s15, v1")
    a("s_waitcnt lgkmcnt(0)")
    a("s_mov_b32 s16, s4"); a("s_mov_b32 s17, s5"); a("s_mov_b32 s18, 1638400"); a("s_mov_b32 s19, 0x20000")
    a("s_mov_b32 s20, s6"); a("s_mov_b32 s21, s7"); a("s_mov_b32 s22, 12800000"); a("s_mov_b32 s23, 0x20000")
    a("s_mov_b32 s24, s8"); a("s_mov_b32 s25, s9"); a("s_mov_b32 s26, 3276800"); a("s_mov_b32 s27, 0x20000")
    a("s_mov_b32 s28, s10"); a("s_mov_b32 s29, s11"); a("s_mov_b32 s30, 0x10000"); a("s_mov_b32 s31, 0x20000")
    a("v_lshrrev_b32 v3, 3, v2")
    a("v_lshlrev_b32 v3, 9, v3")
    a("v_and_b32 v4, 7, v2")
    a("v_lshlrev_b32 v4, 4, v4")
    a("v_add_u32 v3, v3, v4")
    a("s_mul_i32 s32, s15, 819200")
    a("s_lshl_b32 s33, s13, 7")
    a("s_add_u32 s32, s32, s33")
    ldsw = 32768
    a(f"s_mul_i32 s34, s15, {ldsw}")
    a("s_mul_i32 s35, s12, 25600")
    a("s_mul_i32 s36, s15, 100")
    a("s_add_u32 s35, s35, s36")
    a("s_movk_i32 s37, 400")
    IDX = 16
    if mode in ("dma", "regco"):
        a("v_mul_u32_u24 v5, 400, v2")
        for t in range(25):
            a(f"buffer_load_dword v{IDX+t}, v5, s[16:19], s35 offen offset:{4*t}")
        a("v_lshrrev_b32 v6, 3, v2")
        a("v_lshlrev_b32 v6, 2, v6")
    else:
        a("v_and_b32 v5, 31, v2")
        a("v_mul_u32_u24 v5, 400, v5")
        a("v_add_u32 v7, 12800, v5")
        for t in range(25):
            a(f"buffer_load_dword v{IDX+t}, v5, s[16:19], s35 offen offset:{4*t}")
        for t in range(25):
            a(f"buffer_load_dword v{IDX+25+t}, v7, s[16:19], s35 offen offset:{4*t}")
        a("v_lshrrev_b32 v6, 5, v2")
        a("v_lshlrev_b32 v6, 6, v6")
    nt = " nt" if ntB else ""
    def issueB(t):
        out = []
        slot = (t % 2) * 16384 if (mode == "dma") else (t % 4) * 8192
        for i in range(8):
            out.append(f"s_add_u32 s40, s34, {slot + i*1024}")
            out.append("s_mov_b32 m0, s40")
            out.append(f"s_add_u32 s41, s32, {t*32768 + i*4096}")
            out.append(f"buffer_load_dwordx4 v3, s[24:27], s41 offen lds{nt}")
        return out
    nB = 8 if doB else 0
    nA = 8 if doA else 0
    pre = min(depth, 2)
    if doB:
        for t in range(pre):
            L.extend(issueB(t))
    a(f"s_waitcnt vmcnt({nB*pre})")
    n_idx = 25 if mode in ("dma", "regco") else 50
    for t in range(n_idx):
        a(f"v_lshlrev_b32 v{IDX+t}, 7, v{IDX+t}")
    AR = 80
    RING = 96
    def issueA(t):
        out = []
        if mode == "dma":
            for i in range(8):
                out.append(f"v_add_u32 v8, {32*i}, v6")
                out.append(f"ds_bpermute_b32 v{AR+i}, v8, v{IDX+t}")
            out.append("s_waitcnt lgkmcnt(0)")
            slot = (t % 2) * 16384 + 8192
            for i in range(8):
                out.append(f"v_add_u32 v{AR+i}, v{AR+i}, v4")
                out.append(f"s_add_u32 s40, s34, {slot + i*1024}")
                out.append("s_mov_b32 m0, s40")
                out.append("s_nop 0")
                out.append(f"buffer_load_dwordx4 v{AR+i}, s[20:23], 0 offen lds")
        elif mode == "regco":
            for i in range(8):
                out.append(f"v_add_u32 v8, {32*i}, v6")
                out.append(f"ds_bpermute_b32 v{AR+i}, v8, v{IDX+t}")
            out.append("s_waitcnt lgkmcnt(0)")
            base = RING + (t % 5) * 32
            for i in range(8):
                out.append(f"v_add_u32 v{AR+i}, v{AR+i}, v4")
                out.append(f"buffer_load_dwordx4 v[{base+4*i}:{base+4*i+3}], v{AR+i}, s[20:23], 0 offen")
        elif mode == "regmf":
            base = RING + (t % 5) * 32
            for u in range(2):
                out.append(f"v_add_u32 v{AR+u}, v{IDX+25*u+t}, v6")
                for s in range(4):
                    r = base + 16*u + 4*s
                    out.append(f"buffer_load_dwordx4 v[{r}:{r+3}], v{AR+u}, s[20:23], 0 offen offset:{16*s}")
        return out
    per = nA + nB
    for t in range(25):
        if doA: L.extend(issueA(t))
        if doB and t >= pre: L.extend(issueB(t))
        lim = min(63, per * (depth - 1))
        a(f"s_waitcnt vmcnt({lim})")
    a("s_waitcnt vmcnt(0)")
    a("s_barrier")
    a("s_memrealtime s[62:63]")
    a("s_waitcnt lgkmcnt(0)")
    a("v_mov_b32 v10, s60"); a("v_mov_b32 v11, s61"); a("v_mov_b32 v12, s62"); a("v_mov_b32 v13, s63")
    a("s_lshl_b32 s42, s2, 4")
    a("v_mov_b32 v9, s42")
    a("v_cmp_eq_u32 vcc, 0, v0")
    a("s_and_saveexec_b64 s[44:45], vcc")
    a("s_cbranch_execz L_end")
    a("buffer_store_dwordx4 v[10:13], v9, s[28:31], 0 offen")
    a("s_waitcnt vmcnt(0)")
    a("L_end:")
    return header(256, 256, 131072) + "\n".join("    " + x for x in L) + footer()

if __name__ == "__main__":
    import itertools
    for mode in ("dma", "regco", "regmf"):
        for depth in (2, 3, 4):
            open(f"mb_{mode}_d{depth}.s", "w").write(gen(mode, depth))
    for mode in ("dma", "regco", "regmf"):
        open(f"mb_{mode}_Aonly.s", "w").write(gen(mode, 4, doB=False))
    open(f"mb_Bonly.s", "w").write(gen("regmf", 4, doA=False))
    open(f"mb_regmf_noxcd.s", "w").write(gen("regmf", 4, xcdmap=False))
```

```python
from gen_mb import header, footer
def gen(ell=0, st=512, npc=256, w=12, base=0):
    L = []; a = L.append
    a("s_cmp_ge_u32 s2, 256")
    a("s_cbranch_scc1 L_end")
    a("s_load_dwordx2 s[8:9], s[0:1], 24")
    a("s_load_dwordx2 s[6:7], s[0:1], 8")
    a("s_load_dwordx2 s[10:11], s[0:1], 72")
    a("v_lshrrev_b32 v1, 6, v0")
    a("v_and_b32 v2, 63, v0")
    a("s_nop 0")
    a("v_readfirstlane_b32 s15, v1")
    a("s_waitcnt lgkmcnt(0)")
    a("s_mov_b32 s24, s6"); a("s_mov_b32 s25, s7"); a("s_mov_b32 s26, 12800000"); a("s_mov_b32 s27, 0x20000")
    a("s_mov_b32 s28, s10"); a("s_mov_b32 s29, s11"); a("s_mov_b32 s30, 0x100000"); a("s_mov_b32 s31, 0x20000")
    a("v_lshrrev_b32 v3, 3, v2"); a(f"v_mul_u32_u24 v3, {st}, v3")
    a("v_and_b32 v4, 7, v2"); a("v_lshl_add_u32 v5, v4, 4, v3")
    if ell < 0:
        a("s_lshl_b32 s34, s15, 7")
    else:
        a(f"s_mov_b32 s34, {ell*128}")
    a(f"s_add_u32 s34, s34, {base}")
    a("s_lshr_b32 s13, s2, 3")
    span = 8*st*512
    a("s_lshl_b32 m0, s15, 14")
    for ps in range(3):
        a(f"s_memrealtime s[{60+2*ps}:{61+2*ps}]")
        a(f"s_mul_i32 s32, s13, {8*st*16}")
        a(f"s_mul_i32 s33, s15, {8*st*133}")
        a("s_add_u32 s32, s32, s33")
        a(f"s_mov_b32 s40, {npc // 16}")
        a(f"L_hl{ps}:")
        for i in range(16):
            a(f"s_and_b32 s32, s32, {span-1}")
            a("s_add_u32 s35, s32, s34")
            a(f"buffer_load_dwordx4 v5, s[24:27], s35 offen offset:{(i%4)*1024} lds" if False else
              f"buffer_load_dwordx4 v5, s[24:27], s35 offen lds")
            a(f"s_add_u32 s32, s32, {8*st}")
            a(f"s_waitcnt vmcnt({w})")
        a("s_sub_u32 s40, s40, 1")
        a("s_cmp_lg_u32 s40, 0")
        a(f"s_cbranch_scc1 L_hl{ps}")
        a("s_waitcnt vmcnt(0)")
        a(f"s_memrealtime s[{70+2*ps}:{71+2*ps}]")
        a("s_waitcnt lgkmcnt(0)")
        a("s_barrier")
        a("s_sleep 30")
    a("v_mov_b32 v50, 0")
    for ps in range(3):
        a(f"v_writelane_b32 v50, s{60+2*ps}, {2*ps}")
        a(f"v_writelane_b32 v50, s{70+2*ps}, {2*ps+1}")
    a("s_lshl_b32 s42, s2, 10")
    a("v_lshlrev_b32 v51, 2, v0")
    a("v_add_u32 v51, s42, v51")
    a("buffer_store_dword v50, v51, s[28:31], 0 offen")
    a("s_waitcnt vmcnt(0)")
    a("L_end:")
    return header(256, 256, 160*1024) + "\n".join("    " + x for x in L) + footer(496, 256)
if __name__ == "__main__":
    cfg = {f"e{e}": dict(ell=e) for e in range(4)}
    cfg["ew"] = dict(ell=-1)
    cfg["c"] = dict(ell=0, st=128)
    cfg["s256_0"] = dict(ell=0, st=256)
    cfg["s256_1"] = dict(ell=1, st=256)
    for e in (0, 3, 5, 7): cfg[f"s1k_{e}"] = dict(ell=e, st=1024)
    names = []
    for k, v in cfg.items():
        n = f"s12_{k}.s"; open(n, "w").write(gen(**v)); names.append(n)
    print(" ".join(names))
    print(",".join(f'"work/{n}"' for n in names))
```

```python
import sys, struct
from asmlib import Asm, header, footer

NPOS = 25
STG = 16384
BOFF = 3 * STG
IDXO = 6 * STG
UREG = IDXO + 16384
RINGO = UREG + 20480
PIDX = RINGO + 20480
WPR = IDXO
RED = 2 * STG
LDSB = 163840
XB = 1 << 20
FLB = 16 << 20
fb = lambda x: hex(struct.unpack("<I", struct.pack("<f", x))[0])

def ACC(t): return f"v[{16*t}:{16*t+15}]"
def E(kk, mt): b = 64 + 16*kk + 4*mt; return f"v[{b}:{b+3}]"
def Wf(kk, nt): b = 72 + 16*kk + 4*nt; return f"v[{b}:{b+3}]"
def Wh(kk, nt, t): b = 72 + 16*kk + 4*nt + 2*t; return f"v[{b}:{b+1}]"
def E16(k2, mt): b = 64 + 32*k2 + 4*mt; return f"v[{b}:{b+3}]"
def Wf16(k2, nt): b = 80 + 32*k2 + 4*nt; return f"v[{b}:{b+3}]"
def Wh16(k2, nt, t): b = 80 + 32*k2 + 4*nt + 2*t; return f"v[{b}:{b+1}]"
def A16(nt, mt): b = 16*mt + 4*nt; return f"v[{b}:{b+3}]"
def vW16(nt): return ("v248", "v249", "v246", "v247")[nt]
def PA(u, x): return f"v{144 + 2*(u & 1) + x}"
def vPR(var, h): return f"v{148 + 2*var + h}"
vPI1, vP6 = "v152", "v153"
WO = 156; WB = 184; IA = 188; B1F = 192; W2F = 208
vXS, vL16, vB2, vFl = "v224", "v225", "v226", "v227"
def vB(i): return f"v{228+i}"
vRdy, vOne = "v234", "v235"
vT2 = "v236"
vL, vChE, vChO = "v240", "v241", "v242"
def vA(kk): return f"v{244+kk}"
def vW(nt): return f"v{248+nt}"
vIB, vPI, vWD, vWT, vT, vStamp = "v250", "v251", "v252", "v253", "v254", "v255"
def FR(g, s, h): b = 32*g + 8*s + 4*h; return f"a[{b}:{b+3}]"
RING = 168; PACC = 156; WIN = 164; DIN = 128; DT = 128; DS3 = [64, 80, 96]
vWR = "v154"
NEARLY = 5
S_IDX, S_TAB, S_W1, S_WP = "s[16:19]", "s[20:23]", "s[24:27]", "s[28:31]"
S_B1, S_W2, S_WS, S_OUT, S_DBG, S_B2 = "s[32:35]", "s[36:39]", "s[40:43]", "s[44:47]", "s[48:51]", "s[52:55]"
sWv, sMt, sC, sKs, sN, sSel, sT, sU = "s56", "s57", "s58", "s59", "s60", "s61", "s62", "s63"
sStA, sStB, sBb, sSig, sBo, sWsel = "s68", "s69", "s70", "s71", "s72", "s73"
sGa, sGb, sOD, sOT, sKeep = "s74", "s75", "s76", "s77", "s78"
sHi, sW0 = "s79", "s[80:81]"
sM6, sMa, sMb = "s[82:83]", "s[84:85]", "s[86:87]"
sXS0, sXS1, sXL, sFP, sFC, sCnt = "s88", "s89", "s90", "s91", "s96", "s97"
sSigs = ["s71", "s92"]
sRing, sGot = "s93", "s94"
sMa0, sMa1 = "s84", "s85"
PAIRS = [(ga, gb) for gb in range(7) for ga in range(gb + 1)]


def gen(stamps=False, nodma=False, nocomp=False, lead=(6, 3, 0, 0), flagpair=5, noex=False, nopl=False,
        bs2=False, slp=0, nmap=0, rflip=0, vmap=0, swaps=(0,0,0,0), swpos=(2,4,3,1), pst=0, nin=0, in0=12, polls=((13,20),), lastpub=1, wt0=4, p0=0, wpslot=1, xsm=' sc1', xlm=' sc1', flm=' sc1', plm=' sc1', allst=0, m16=0, pf=0, pfw=0, pfm='', pfpos=0, wpro=2, wwr=22, early=1, pord='IBPWC', cpf=(), cpx=1, nbf=(), insl=(5,9,10,13,14,15,17,18,19,20,21,22,23)):
    global RING, PACC
    if wpro == 2: RING, PACC = 128, 120
    PRIV = 156; NSH = 20 if wpro == 2 else 28
    global WIN
    LA = [232, 233, 237, 238]
    in2 = wpro == 2 and nin > 0
    if in2: WIN = 184
    OOL = []
    ORD = []
    for e in range(8):
        n_, j_ = e >> 2, e & 3
        r = (j_ + 2*n_) & 3
        cand = [f for f in range(25) if (f - j_) % 4 == 3]
        sw = set(cand[i] for i in swpos[:swaps[j_]])
        def key(f):
            l = lead[(f - r) % 4]
            if f in sw: l = lead[1] if n_ == 0 else lead[3]
            return (f - l, f)
        ORD.append(sorted(range(25), key=key))
    a = Asm(); a.auto_lg = True
    nst = [0]

    def stamp(tail=False):
        if stamps and not (tail and allst):
            a("s_memrealtime s[98:99]"); a("s_memtime s[100:101]"); a.wait_lg0()
            a(f"v_writelane_b32 {vStamp}, s98, {2*nst[0]}")
            a(f"v_writelane_b32 {vStamp}, s100, {2*nst[0]+1}")
            nst[0] += 1

    def emit(items):
        for it in items:
            if it[0] == "s": a(it[1])
            elif it[0] == "vm": a.vmem(it[1], it[2])
            elif it[0] == "ds": a.ds(it[1], it[2])
            elif it[0] == "wl": a.wait(lg=it[1])
            elif it[0] == "wv": a.wait(vm=it[1])
            else: raise ValueError(it)

    def srd(name, lo, hi, n, pre=False):
        b = int(name[2:].split(":")[0])
        if early and not pre and name in (S_IDX, S_W1, S_WP, S_TAB): return
        if not early:
            a(f"s_mov_b32 s{b}, {lo}"); a(f"s_mov_b32 s{b+1}, {hi}")
        a(f"s_mov_b32 s{b+2}, {n}"); a(f"s_mov_b32 s{b+3}, 0x20000")

    a("s_cmp_ge_u32 s2, 256"); a("s_cbranch_scc1 L_end")
    SRDS = [(S_IDX, 0, 1638400), (S_W1, 24, 3276800), (S_WP, 16, 20000), (S_TAB, 8, 12800000), (S_B1, 32, 512),
            (S_W2, 40, 512), (S_B2, 48, 2), (S_OUT, 56, 8192), (S_DBG, 64, 256), (S_WS, 72, 32 << 20)]
    def sb(name): return int(name[2:].split(":")[0])
    if early:
        for nm, off, n in SRDS:
            a(f"s_load_dwordx2 s[{sb(nm)}:{sb(nm)+1}], s[0:1], {off}")
    else:
        a("s_load_dwordx4 s[4:7], s[0:1], 0")
        a("s_load_dwordx4 s[8:11], s[0:1], 16")
        a("s_load_dwordx4 s[12:15], s[0:1], 32")
        a("s_load_dwordx4 s[92:95], s[0:1], 48")
        a("s_load_dwordx4 s[64:67], s[0:1], 64")
    if stamps: a("s_memrealtime s[98:99]"); a("s_memtime s[100:101]")
    a("v_lshrrev_b32 v1, 6, v0")
    a(f"v_and_b32 {vL}, 63, v0")
    a(f"v_readfirstlane_b32 {sWv}, v1")
    a("s_and_b32 s3, s2, 7")
    a(f"s_lshr_b32 {sT}, s2, 3")
    a(f"s_lshr_b32 {sU}, {sT}, 3")
    a(f"s_and_b32 {sC}, {sT}, 7")
    def cpref(off):
        o = f"L_end-L_pc-{8192*cpx}" if off < 0 else str(off)
        return [("s", f"s_add_u32 s15, s14, {o}"), ("s", f"v_lshl_add_u32 {vT2}, {vL}, {1+cpx}, s15"),
                ("vm", f"global_load_dword{'x2' if cpx == 2 else ''} {'a[254:255]' if cpx == 2 else 'a255'}, {vT2}, s[12:13]", "cpf")]
    if cpf:
        a("s_getpc_b64 s[12:13]")
        a("L_pc:")
        a(f"s_lshl2_add_u32 s14, {sC}, {sWv}")
        a(f"s_lshl_b32 s14, s14, {7+cpx}")
        for pos, off in cpf:
            if pos == -1: emit(cpref(off))
    if nmap == 0:
        a(f"s_and_b32 {sN}, {sT}, 1")
        a(f"s_lshr_b32 {sKs}, {sC}, 1")
    elif nmap == 1:
        a(f"s_lshr_b32 {sN}, {sC}, 2")
        a(f"s_and_b32 {sKs}, {sC}, 3")
    else:
        a(f"s_andn2_b32 {sN}, 1, {sT}")
        a(f"s_lshr_b32 {sKs}, {sC}, 1")
    a(f"s_lshl2_add_u32 {sMt}, s3, {sU}")
    a(f"s_lshl2_add_u32 {sSel}, {sN}, {sU}")
    a(f"s_lshl_b32 {sSel}, {sSel}, 2")
    a(f"s_or_b32 {sSel}, {sSel}, 0x40000")
    a(f"v_lshrrev_b32 v2, 3, {vL}")
    a(f"v_and_b32 v3, 7, {vL}")
    a("v_mul_u32_u24 v4, 400, v2")
    a("v_lshl_add_u32 v4, v3, 4, v4")
    a(f"s_mul_i32 s3, {sMt}, 51200")
    a(f"s_mul_i32 {sT}, {sWv}, 12800")
    a(f"s_mul_i32 {sU}, {sKs}, 100")
    a(f"s_add_u32 {sT}, {sT}, s3")
    a(f"s_add_u32 {sOD}, {sT}, {sU}")
    a(f"s_mul_i32 {sT}, {sC}, 6400")
    a(f"s_add_u32 s3, s3, {sT}")
    a(f"s_mul_i32 {sT}, {sWv}, 1600")
    a(f"s_add_u32 {sOT}, s3, {sT}")
    a(f"s_lshl_b32 {sStA}, {sWv}, 12")
    if m16:
        a("v_and_b32 v5, 2, v2")
    else:
        a(f"v_lshrrev_b32 v5, 2, {vL}")
        a("v_and_b32 v5, 4, v5")
    a("v_xor_b32 v5, v5, v3")
    a("v_lshlrev_b32 v6, 9, v2")
    a(f"v_lshl_add_u32 {vB(0)}, v5, 4, v6")
    if m16:
        a(f"v_xor_b32 v5, 64, {vB(0)}")
    for i in range(1, 4):
        a(f"v_add_u32 {vB(i)}, {3072*i}, {'v5' if (m16 and i & 1) else vB(0)}")
    a(f"s_and_b32 s3, {sWv}, 1")
    a(f"s_lshr_b32 {sT}, {sWv}, 1")
    a(f"s_lshl_b32 {sStB}, s3, 13")
    a(f"s_lshl_b32 {sU}, {sT}, 12")
    a(f"s_add_u32 {sStB}, {sStB}, {sU}")
    a(f"s_add_u32 {sStB}, {sStB}, {BOFF}")
    a(f"s_mul_i32 {sBb}, {sKs}, {25*32768}")
    a(f"s_lshl_b32 {sU}, {sT}, 14")
    a(f"s_add_u32 {sBb}, {sBb}, {sU}")
    if vmap == 2:
        a(f"s_xor_b32 {sU}, {sN}, s3")
        a(f"s_lshl_b32 {sU}, {sU}, 7")
    else:
        a(f"s_lshl_b32 {sU}, {sN}, {7 if vmap else 8}")
    a(f"s_add_u32 {sBb}, {sBb}, {sU}")
    a(f"s_lshl_b32 {sU}, s3, {8 if vmap else 7}")
    a(f"s_add_u32 {sBb}, {sBb}, {sU}")
    a(f"v_lshlrev_b32 {vL16}, 4, {vL}")
    def sig(p, dst=sSig):
        packed = 0
        for o in range(8):
            d = ORD[o][p] - p
            assert -8 <= d <= 7
            packed |= (d & 15) << (4*o)
        return [("s", f"s_bfe_i32 {dst}, {hex(packed)}, {sSel}"), ("s", f"s_add_u32 {dst}, {dst}, {p}")]

    def dmaB(p, sg=sSig):
        pre = [("s", f"s_lshl_b32 {sBo}, {sg}, 15"), ("s", f"s_add_u32 {sBo}, {sBo}, {sBb}"),
               ("s", f"s_add_u32 m0, {sStB}, {(p % 3)*STG}")]
        out = []
        for i in range(4):
            out.append((pre if i == 0 else []) +
                       [("vm", f"buffer_load_dwordx4 {vB(i)}, {S_W1}, {sBo} offen offset:{1024*i} lds", f"B{p}")])
        return out

    def idxrd(p, r=IA, sg=sSig):
        return [("s", f"v_lshl_add_u32 {vT}, {sg}, 2, {vIB}"),
                ("ds", f"ds_read2st64_b32 v[{r}:{r+1}], {vT} offset0:0 offset1:4", f"I{p}"),
                ("ds", f"ds_read2st64_b32 v[{r+2}:{r+3}], {vT} offset0:8 offset1:12", f"I{p}")]

    def dmaA(p, r=IA):
        out = []
        for i in range(4):
            out.append([("s", f"s_add_u32 m0, {sStA}, {(p % 3)*STG + 1024*i}"),
                        ("s", f"v_lshl_add_u32 v{r+i}, v{r+i}, 7, {vChO if i & 1 else vChE}"),
                        ("vm", f"buffer_load_dwordx4 v{r+i}, {S_TAB}, 0 offen lds", f"A{p}")])
        return out

    def dmaWP():
        out = []
        for i in range(5):
            pre = []
            if i == 0:
                pre = [("s", f"s_mul_i32 {sMa0}, {sWv}, 5120"), ("s", f"s_add_u32 {sMa1}, {sMa0}, 4096")]
            out.append(pre + [("s", f"s_add_u32 m0, {sMa0}, {UREG + (4096 if i == 4 else 0)}"),
                       ("vm", f"buffer_load_dwordx4 {vL16}, {S_WP}, {sMa1 if i == 4 else sMa0} offen offset:{1024*(i & 3)} lds", "wp")])
        return out

    def lanec():
        a(f"v_lshrrev_b32 v7, 4, {vL}")
        a("v_xor_b32 v8, v3, v7")
        a(f"v_lshlrev_b32 {vChE}, 4, v8")
        a(f"v_xor_b32 {vChO}, 64, {vChE}")
        a(f"s_add_u32 {sT}, {sStA}, {IDXO}")
        a(f"v_lshl_add_u32 {vIB}, v2, 7, {sT}")

    def startA():
        a.wait(vm="idx")
        stamp()
        T0 = 20
        emit(idxrd(0, T0, sGa)); emit(idxrd(1, T0 + 4, sGb)); emit(idxrd(2, DIN, sKeep))
        a.wait(lg="I0")
        for g in dmaA(0, T0): emit(g)
        a.wait(lg="I1")
        for g in dmaA(1, T0 + 4): emit(g)

    def dmaIdx():
        for i in range(4):
            a(f"s_add_u32 m0, {sStA}, {IDXO + 1024*i}")
            if i: a(f"s_add_u32 {sOD}, {sOD}, 3200")
            a.vmem(f"buffer_load_dwordx4 v4, {S_IDX}, {sOD} offen lds", "idx")

    def dmaPidx():
        a(f"s_mul_i32 {sT}, {sWv}, 1600")
        a(f"s_add_u32 m0, {sT}, {PIDX}")
        srd(S_TAB, "s6", "s7", 12800000)
        for i in range(2):
            a.vmem(f"buffer_load_dwordx4 {vL16}, {S_IDX}, {sOT} offen offset:{1024*i} lds", "pidx")

    if early:
        for nm, off, n in SRDS[:4]: srd(nm, None, None, n, True)
        emit(sig(0, sGa)); emit(sig(1, sGb)); emit(sig(2, sKeep))
        lanec()
    a.wait_lg0()
    if early:
        assert wpro
        for k in pord:
            if k == "I": dmaIdx()
            if k == "B":
                for g in dmaB(0, sGa): emit(g)
            if k == "C":
                for g in dmaB(1, sGb): emit(g)
            if k == "P": dmaPidx()
            if k == "W":
                for g in dmaWP(): emit(g)
        if stamps:
            a(f"v_writelane_b32 {vStamp}, s98, 0"); a(f"v_writelane_b32 {vStamp}, s100, 1"); nst[0] = 1
        startA()
        if "C" not in pord:
            for g in dmaB(1, sGb): emit(g)
    else:
        srd(S_IDX, "s4", "s5", 1638400)
        dmaIdx()
        srd(S_W1, "s10", "s11", 3276800)

    if not early:
        if wpro:
            srd(S_WP, "s8", "s9", 20000)
            for g in dmaWP(): emit(g)
        emit(sig(0, sGa))
        for g in dmaB(0, sGa): emit(g)
        emit(sig(1, sGb))
        for g in dmaB(1, sGb): emit(g)
        dmaPidx()
    def prefetch():
        if pf:
            a(f"s_lshl2_add_u32 {sT}, s2, {sWv}")
            a(f"s_mul_i32 {sT}, {sT}, {1024*pf}")
            for i in range(pf):
                if i and i % 4 == 0: a(f"s_add_u32 {sT}, {sT}, 4096")
                a.vmem(f"buffer_load_dwordx4 a[{4*i}:{4*i+3}], {vL16}, {S_TAB}, {sT} offen offset:{1024*(i & 3)}{pfm}", "pf")
        if pfw:
            a(f"s_lshl2_add_u32 {sT}, s2, {sWv}")
            a(f"s_mul_i32 {sT}, {sT}, {1024*pfw}")
            for i in range(pfw):
                a.vmem(f"buffer_load_dwordx4 a[{64+4*i}:{64+4*i+3}], {vL16}, {S_W1}, {sT} offen offset:{1024*i}{pfm}", "pf")
    if pfpos == 0: prefetch()
    if not wpro: srd(S_WP, "s8", "s9", 20000)
    srd(S_B1, "s12", "s13", 512)
    srd(S_W2, "s14", "s15", 512)
    srd(S_B2, "s92", "s93", 2)
    srd(S_OUT, "s94", "s95", 8192)
    srd(S_DBG, "s64", "s65", 256)
    srd(S_WS, "s66", "s67", 32 << 20)
    if not early:
        if stamps:
            a(f"v_writelane_b32 {vStamp}, s98, 0"); a(f"v_writelane_b32 {vStamp}, s100, 1"); nst[0] = 1
        emit(sig(2, sKeep))
        lanec()
    a(f"v_lshrrev_b32 v9, 5, {vL}")
    a(f"v_bfe_u32 v10, {vL}, 1, 3")
    a(f"v_xor_b32 v10, v10, {'v7' if m16 else 'v9'}")
    a("v_lshlrev_b32 v10, 4, v10")
    a(f"v_and_b32 v11, {15 if m16 else 31}, {vL}")
    a("v_lshl_add_u32 v10, v11, 7, v10")
    a(f"s_lshr_b32 {sT}, {sWv}, 1")
    a(f"s_lshl_b32 {sT}, {sT}, 13")
    a(f"v_add_u32 {vA(0)}, {sT}, v10")
    for kk in range(1, 2 if m16 else 4):
        a(f"v_xor_b32 {vA(kk)}, {64 if m16 else 32*kk}, {vA(0)}")
    a(f"v_bfe_u32 v12, {vL}, 2, 2")
    a(f"v_and_b32 v13, 3, {vL}")
    if m16:
        a("v_lshl_add_u32 v14, v7, 3, v12")
        a("v_lshlrev_b32 v14, 7, v14")
        a("v_and_b32 v15, 1, v7")
        a("v_lshlrev_b32 v15, 2, v15")
        a("v_lshrrev_b32 v16, 1, v13")
        a("v_xor_b32 v15, v15, v16")
        a("v_and_b32 v16, 2, v12")
        a("v_xor_b32 v15, v15, v16")
    else:
        a("v_lshl_add_u32 v14, v9, 3, v12")
        a("v_lshlrev_b32 v14, 7, v14")
        a("v_and_b32 v15, 1, v7")
        a("v_lshlrev_b32 v15, 1, v15")
        a("v_lshrrev_b32 v16, 1, v13")
        a("v_add_u32 v15, v15, v16")
        a("v_and_b32 v16, 2, v12")
        a("v_lshlrev_b32 v16, 1, v16")
        a("v_xor_b32 v15, v15, v16")
    a("v_lshl_add_u32 v14, v15, 4, v14")
    a("v_and_b32 v16, 1, v13")
    a("v_lshl_add_u32 v14, v16, 3, v14")
    a(f"s_and_b32 s3, {sWv}, 1")
    a(f"s_lshl_b32 s3, s3, 13")
    a(f"s_add_u32 s3, s3, {BOFF}")
    a(f"v_add_u32 {vW(0)}, s3, v14")
    if m16:
        for nt in range(1, 4):
            a(f"v_xor_b32 {vW16(nt)}, {32*nt}, {vW(0)}")
    else:
        a(f"v_xor_b32 {vW(1)}, 64, {vW(0)}")
    a("v_lshrrev_b32 v17, 2, v2")
    a("v_and_b32 v18, 3, v2")
    a("v_mul_u32_u24 v19, 100, v17")
    a("v_lshl_add_u32 v19, v18, 2, v19")
    a(f"s_mul_i32 {sT}, {sWv}, 1600")
    a(f"s_add_u32 {sT}, {sT}, {PIDX}")
    a(f"v_add_u32 {vPI}, {sT}, v19")
    a(f"v_add_u32 {vPI1}, 800, {vPI}")
    a("v_mul_u32_u24 v19, 400, v17")
    a("v_mul_u32_u24 v18, 100, v18")
    a(f"s_add_u32 {sT}, {sT}, 96")
    a(f"v_add3_u32 {vP6}, v19, v18, {sT}")
    a(f"s_mul_i32 {sRing}, {sWv}, 5120")
    a(f"s_add_u32 {sRing}, {sRing}, {RINGO}")

    def pidxrd(u):
        b = 144 + 2*(u & 1)
        if u == 24:
            return [("ds", f"ds_read2_b32 v[{b}:{b+1}], {vP6} offset0:0 offset1:200", f"PI{u}")]
        g, s_ = u >> 2, u & 3
        o = 100*(s_ & 1) + 4*g
        return [("ds", f"ds_read2_b32 v[{b}:{b+1}], {vPI1 if s_ >= 2 else vPI} offset0:{o} offset1:{o+50}", f"PI{u}")]

    def pdma(u, x):
        n = 2*u + x
        return [("s", f"s_add_u32 m0, {sRing}, {(n % 5)*1024}"),
                ("s", f"v_lshl_add_u32 {PA(u,x)}, {PA(u,x)}, 7, {vChO if x else vChE}"),
                ("vm", f"buffer_load_dwordx4 {PA(u,x)}, {S_TAB}, 0 offen lds", f"P{u}")]

    def prd(u):
        g, s_ = u >> 2, u & 3
        b = (2*u) % 5
        return [("ds", f"ds_read_b128 {FR(g,s_,h)}, {vPR(1 if b == 4 else 0, h)} offset:{b*1024}", f"PR{u}")
                for h in range(2)]

    a(f"s_cmp_eq_u32 {sWv}, 0")
    a(f"s_cselect_b64 {sW0}, 1, 0")
    for i in range(4):
        a(f"v_mov_b32 v{WB+i}, 0")
    a(f"s_lshl3_add_u32 {sFC}, {sMt}, {sC}")
    a(f"s_lshl_b32 {sXL}, {sFC}, 15")
    a(f"s_lshl_b32 {sFC}, {sFC}, 7")
    a(f"s_add_u32 {sFC}, {sFC}, {FLB}")
    a(f"s_cmp_eq_u32 {sWv}, 0")
    a(f"s_cselect_b64 exec, 15, 0")
    a.vmem(f"buffer_store_dwordx4 v[{WB}:{WB+3}], {vL16}, {S_WS}, {sFC} offen sc1", "clr")
    a("s_mov_b64 exec, -1")
    if m16:
        a("v_lshlrev_b32 v18, 3, v7")
    else:
        a("v_lshrrev_b32 v18, 1, v7")
        a("v_lshlrev_b32 v18, 6, v18")
        a("v_and_b32 v19, 1, v7")
        a("v_lshl_add_u32 v18, v19, 3, v18")
    rs = 32 if m16 else 16
    a(f"s_lshl_b32 {sT}, {sWv}, 7")
    for r in range(4):
        a.vmem(f"buffer_load_dwordx2 v[{B1F+8+2*r}:{B1F+9+2*r}], v18, {S_B1}, {sT} offen offset:{rs*r}", "bw")
    for r in range(4):
        a.vmem(f"buffer_load_dwordx2 v[{W2F+8+2*r}:{W2F+9+2*r}], v18, {S_W2}, {sT} offen offset:{rs*r}", "bw")
    a.vmem(f"buffer_load_ushort {vB2}, off, {S_B2}, 0", "bw")
    a(f"v_and_b32 v19, 15, {vL}")
    a(f"v_bfe_u32 v32, {vL}, 1, 3")
    a("v_xor_b32 v32, v32, v7")
    a("v_lshlrev_b32 v32, 4, v32")
    a("v_lshl_add_u32 v32, v19, 7, v32")
    a(f"v_add_u32 {vPR(0,0)}, {sRing}, v32")
    a(f"v_xor_b32 {vPR(0,1)}, 64, {vPR(0,0)}")
    a("v_lshrrev_b32 v19, 3, v19")
    a("v_mul_u32_u24 v19, 5120, v19")
    a(f"v_sub_u32 {vPR(1,0)}, {vPR(0,0)}, v19")
    a(f"v_sub_u32 {vPR(1,1)}, {vPR(0,1)}, v19")
    a("v_mul_u32_u24 v19, 5000, v7")
    a("v_mul_u32_u24 v32, 50, v12")
    a("v_lshl_add_u32 v32, v13, 1, v32")
    a(f"s_mov_b32 s3, {UREG}")
    a(f"v_add3_u32 {vWD}, v19, v32, s3")
    a("v_mul_u32_u24 v19, 5000, v12")
    a("v_mul_u32_u24 v32, 200, v13")
    a("v_mul_u32_u24 v33, 50, v7")
    a("v_add3_u32 v19, v19, v32, v33")
    a(f"v_add_u32 {vWT}, s3, v19")
    a(f"s_lshl_b32 {sWsel}, {sWv}, 3")
    a(f"s_or_b32 {sWsel}, {sWsel}, 0x80000")
    a(f"s_mov_b32 {sHi}, 0xffff0000")
    a("s_mov_b32 s82, 0x11111111"); a("s_mov_b32 s83, 0x11111111")
    a(f"v_mov_b32 {vOne}, 1")
    a(f"v_add_u32 {vWR}, {IDXO}, {vL16}")
    for i in range(28):
        a(f"v_mov_b32 v{156+i}, 0")
    if in2: a("v_mov_b32 v155, 0")
    if wpro:
        for i in range(40 if wpro == 2 else 28):
            a(f"v_mov_b32 v{64+i}, 0")
    if wpro == 2:
        for i in range(24):
            a(f"v_mov_b32 v{36+i}, 0")
    if m16:
        a(f"v_add_u32 {vXS}, 0x8000, {vL16}")
    else:
        a(f"v_bfe_u32 v19, {vL}, 4, 1")
        a("v_lshlrev_b32 v19, 15, v19")
        a("v_lshl_add_u32 v19, v9, 8, v19")
        a(f"v_and_b32 v32, 15, {vL}")
        a(f"v_lshl_add_u32 {vXS}, v32, 4, v19")
    a(f"v_lshlrev_b32 {vFl}, 7, {vL}")
    a(f"s_lshr_b32 {sT}, {sWv}, 1")
    a(f"s_lshl_b32 s3, {sMt}, 3")
    a(f"s_lshl2_add_u32 s3, {sT}, s3")
    a(f"s_and_b32 {sT}, {sWv}, 1")
    if vmap == 2:
        a(f"s_xor_b32 {sU}, {sN}, {sT}")
        a(f"s_lshl1_add_u32 {sT}, {sT}, {sU}")
    elif vmap: a(f"s_lshl1_add_u32 {sT}, {sT}, {sN}")
    else: a(f"s_lshl1_add_u32 {sT}, {sN}, {sT}")
    a(f"s_lshl2_add_u32 {sT}, {sT}, {sKs}")
    a(f"s_lshl_b32 {sXS0}, s3, 15")
    a(f"s_lshl_b32 {sU}, {sT}, 11")
    a(f"s_add_u32 {sXS0}, {sXS0}, {sU}")
    a(f"s_add_u32 {sXS0}, {sXS0}, {XB}")
    a(f"s_add_u32 {sXS1}, {sXS0}, 65536")
    a(f"s_lshl_b32 {sFP}, s3, 7")
    a(f"s_lshl2_add_u32 {sFP}, {sT}, {sFP}")
    a(f"s_add_u32 {sFP}, {sFP}, {FLB}")
    a(f"s_lshl_b32 {sU}, {sWv}, 13")
    a(f"s_add_u32 {sXL}, {sXL}, {sU}")
    a(f"s_add_u32 {sXL}, {sXL}, {XB}")
    a(f"s_lshl4_add_u32 {sFC}, {sWv}, {sFC}")

    if not early: startA()
    if pfpos == 1: prefetch()
    if not nopl:
        a.wait(vm="pidx")
        emit(pidxrd(0))

    def reads(p, kk):
        sb = (p % 3) * STG
        tag = f"R{p}_{kk}"
        r = []
        if m16:
            k2 = kk >> 1
            for x in range(2*(kk & 1), 2*(kk & 1) + 2):
                r.append(("ds", f"ds_read_b128 {E16(k2,x)}, {vA(k2)} offset:{sb + x*2048}", tag))
                for t in range(2):
                    r.append(("ds", f"ds_read_b64_tr_b16 {Wh16(k2,x,t)}, {vW16(x)} offset:{sb + k2*4096 + t*512}", tag))
            return r
        for x in range(2):
            r.append(("ds", f"ds_read_b128 {E(kk,x)}, {vA(kk)} offset:{sb + x*4096}", tag))
            for t in range(2):
                r.append(("ds", f"ds_read_b64_tr_b16 {Wh(kk,x,t)}, {vW(x)} offset:{sb + kk*2048 + t*512}", tag))
        return r

    def deep(p, kk, tau):
        nt, mt = tau >> 1, tau & 1
        c = "0" if (p == 0 and kk == 0) else ACC(tau)
        return ("s", f"v_mfma_f32_32x32x16_bf16 {ACC(tau)}, {Wf(kk,nt)}, {E(kk,mt)}, {c}")

    ORD16 = [(0,0),(1,0),(0,1),(1,1), (2,0),(2,1),(0,2),(1,2), (2,2),(3,0),(3,1),(3,2), (0,3),(1,3),(2,3),(3,3)]
    def deep16(p, k2, nt, mt):
        c = "0" if (p == 0 and k2 == 0) else A16(nt, mt)
        return ("s", f"v_mfma_f32_16x16x32_bf16 {A16(nt,mt)}, {Wf16(k2,nt)}, {E16(k2,mt)}, {c}")

    def gap(p, half, i, fill, order=None):
        if nocomp:
            emit(fill); return
        if not m16:
            kk, tau = order if order else (2*half + (i >> 2), i & 3)
            emit([deep(p, kk, tau)]); emit(fill); return
        o = order if order else ORD16[2*i:2*i+2]
        h = (len(fill) + 1) // 2
        emit([deep16(p, half, *o[0])]); emit(fill[:h])
        emit([deep16(p, half, *o[1])]); emit(fill[h:])

    extra = {p: [] for p in range(NPOS)}
    post = {p: [] for p in range(NPOS)}
    gat_x, gat_y = [], []
    for t in range(5 if wpro == 2 else 7):
        p = wt0 + t
        WO = 84 if wpro == 2 else 156
        WBt = 64 + 4*t if wpro else WB
        sKp = f"s{4+t}" if wpro else sKeep
        packed = 0
        for w in range(4):
            ga, gb = PAIRS[4*t + w]
            packed |= (ga | gb << 3 | (ga != gb) << 6) << (8*w)
        x = [("s", f"s_bfe_u32 {sOD}, {hex(packed)}, {sWsel}"),
             ("s", f"s_and_b32 {sGa}, {sOD}, 7"), ("s", f"s_bfe_u32 {sGb}, {sOD}, 0x30003"),
             ("s", f"s_bitcmp1_b32 {sOD}, 6"), ("s", f"s_cselect_b32 {sKp}, 1.0, 0"),
             ("s", f"s_mul_i32 {sOD}, {sGa}, 800"), ("s", f"s_mul_i32 {sOT}, {sGb}, 800"),
             ("s", f"s_lshl3_add_u32 {sOD}, {sGb}, {sOD}"), ("s", f"s_lshl3_add_u32 {sOT}, {sGa}, {sOT}"),
             ("s", f"v_add_u32 {vT2}, {sOD}, {vWD}")]
        for e in range(4):
            x.append(("ds", f"ds_read_u16_d16_hi v{WO+4*t+e}, {vT2} offset:{200*e}", f"WR{t}"))
        x.append(("s", f"v_add_u32 {vT2}, {sOT}, {vWT}"))
        for e in range(4):
            x.append(("ds", f"ds_read_u16_d16_hi v{WBt+e}, {vT2} offset:{2*e}", f"WR{t}"))
        if wpro: gat_x += x
        else: extra[p] += x
        y = [("s", f"v_fma_f32 v{WO+4*t+e}, v{WBt+e}, {sKp}, v{WO+4*t+e}") for e in range(4)]
        if t == 5:
            y = [("s", f"s_cmp_eq_u32 {sWv}, 0"), ("s", f"s_cselect_b64 {sMa}, -1, {sM6}")] + y
            y += [("s", f"v_cndmask_b32 v{WO+4*t+e}, 0, v{WO+4*t+e}, {sMa}") for e in range(4)]
        if t == 6:
            y = [("s", f"s_cmp_eq_u32 {sWv}, 3"), ("s", f"s_cselect_b64 {sMb}, 0, {sM6}")] + y
            y += [("s", f"v_cndmask_b32 v{WO+4*t+e}, 0, v{WO+4*t+e}, {sM6 if e == 0 else sMb}") for e in range(4)]
        if wpro: gat_y += [("wl", f"WR{t}")] + y
        else: post[p] += y
    pe = wt0 + 6
    gat_w = []
    if wpro == 2:
        for P in range(20, 28):
            ga, gb = PAIRS[P]
            d, tr = PRIV + 4*(P-20), 36 + 4*(P-21)
            if P == 27 and in2: d = 155
            es = range(1) if P == 27 else range(4)
            for e in es:
                gat_x.append(("ds", f"ds_read_u16_d16_hi v{d+e}, {vWD} offset:{800*ga + 8*gb + 200*e}", f"WP{P}"))
            y = []
            if ga != gb:
                for e in es:
                    gat_x.append(("ds", f"ds_read_u16_d16_hi v{tr+e}, {vWT} offset:{800*gb + 8*ga + 2*e}", f"WP{P}"))
                    y.append(("s", f"v_add_f32 v{d+e}, v{d+e}, v{tr+e}"))
            if gb == 6:
                y += [("s", f"v_cndmask_b32 v{d+e}, 0, v{d+e}, {sM6}") for e in es]
            gat_y += [("wl", f"WP{P}")] + y
        gat_w.append(("s", f"s_lshl_b32 {sT}, {sWv}, 10"))
        gat_w.append(("s", f"v_add_u32 {vT2}, {sT}, {vWR}"))
        for t in range(5):
            gat_w.append(("ds", f"ds_write_b128 {vT2}, v[{WO+4*t}:{WO+4*t+3}] offset:{16384 + 4096*t}", "WW"))
    elif wpro or wwr:
        assert nin == 0
        post[wwr].append(("s", f"s_lshl_b32 {sT}, {sWv}, 10"))
        post[wwr].append(("s", f"v_add_u32 {vT2}, {sT}, {vWR}"))
        for t in range(7):
            o = 16384 + 4096*t if t < NEARLY else 4096*(t-NEARLY)
            post[wwr].append(("ds", f"ds_write_b128 {vT2}, v[{WO+4*t}:{WO+4*t+3}] offset:{o}", "WW"))
    else:
        post[pe].append(("s", f"s_lshl_b32 {sT}, {sWv}, 10"))
        post[pe].append(("s", f"v_add_u32 {vT2}, {sT}, {vWR}"))
        for t in range(NEARLY):
            (post[pe] if t < 3 else extra[pe+1]).append(
                ("ds", f"ds_write_b128 {vT2}, v[{WO+4*t}:{WO+4*t+3}] offset:{16384 + 4096*t}", "WW"))
        for t in range(NEARLY, 7):
            post[21].append(("ds", f"ds_write_b128 {vT2}, v[{WO+4*t}:{WO+4*t+3}] offset:{4096*(t-NEARLY)}", "WW"))
        assert in0 >= pe + 2
    unp = []
    for base, p in ((B1F, 2), (W2F, 3)):
        for r in range(8):
            (unp if wpro and not early else extra[p]).append(("s", f"v_lshlrev_b32 v{base+2*r}, 16, v{base+8+r}"))
            (unp if wpro and not early else extra[p]).append(("s", f"v_and_b32 v{base+2*r+1}, {sHi}, v{base+8+r}"))
    (unp if wpro and not early else extra[1]).append(("s", f"v_lshlrev_b32 {vB2}, 16, {vB2}"))

    def woff(P): return 16384 + 1024*P if P < 4*NEARLY else 1024*(P - 4*NEARLY)

    def ring(P):
        b = RING + 4*(P % 4)
        return ("ds", f"ds_read_b128 v[{b}:{b+3}], {vWR} offset:{woff(P)}", f"RG{P}")

    def fmas(P, d, w):
        if in2 and P < nin:
            return [(f"v_mul_f32 v{LA[s]}, v{d+4*s+e}, v{w+e}" if P == 0 and e == 0 else
                     f"v_fmac_f32 v{LA[s]}, v{d+4*s+e}, v{w+e}") for e in range(4) for s in range(4)]
        return [(f"v_mul_f32 v{PACC+2*s+(e&1)}, v{d+4*s+e}, v{w+e}" if P == (nin if in2 else 0) and e < 2 else
                 f"v_fmac_f32 v{PACC+2*s+(e&1)}, v{d+4*s+e}, v{w+e}") for s in range(4)
                for e in range(1 if (P == 27 and wpro == 2) else 4)]

    def wreg(P): return 155 if (P == 27 and in2) else RING + 4*(P % 4) if P < NSH else PRIV + 4*(P - NSH)

    def pmfma(P, d):
        ga, gb = PAIRS[P]
        out = []
        for h in range(2):
            for s in range(4):
                dd = f"v[{d+4*s}:{d+4*s+3}]"
                out.append(f"v_mfma_f32_16x16x32_bf16 {dd}, {FR(ga,s,h)}, {FR(gb,s,h)}, {'0' if h == 0 else dd}")
        return out
    inl = {}
    for P in range(nin):
        p = in0 + P if in0 else insl[P]
        assert p <= 24 and p >= 4*PAIRS[P][1] + 5, (P, p)
        inl[p] = P

    def blk6():
        r = [f"v_bfe_u32 v144, {vL}, 3, 1", f"v_lshrrev_b32 v145, 4, {vL}", "v_xor_b32 v144, v144, v145",
             f"v_bfe_u32 v145, {vL}, 2, 2", "v_lshlrev_b32 v145, 7, v145", "v_lshl_add_u32 v144, v144, 4, v145",
             f"v_add_u32 v144, {sRing}, v144"]
        r += [f"v_xor_b32 v{144+k}, {32*k}, v144" for k in range(1, 4)]
        r += [f"s_mov_b32 {sGot}, 0", f"s_add_u32 {sU}, {sXL}, 4096"]
        if nbf: r += ["s_mov_b32 s95, 1"]
        return [("s", x) for x in r]

    def pub(tau, qd):
        nt, mt = tau >> 1, tau & 1
        r = [("s", f"v_cvt_pk_bf16_f32 v{16*tau+i}, v{16*tau+2*i}, v{16*tau+2*i+1}") for i in range(4*qd, 4*qd + 4)]
        if not noex:
            if m16:
                r.append(("vm", f"buffer_store_dwordx4 v[{16*tau+4*qd}:{16*tau+4*qd+3}], {vXS if mt else vL16}, {S_WS}, "
                          f"{sXS1 if nt else sXS0} offen offset:{1024*qd}{xsm}", "xs"))
            else:
                r.append(("vm", f"buffer_store_dwordx4 v[{16*tau+4*qd}:{16*tau+4*qd+3}], {vXS}, {S_WS}, "
                          f"{sXS1 if mt else sXS0} offen offset:{1024*qd + 512*nt}{xsm}", "xs"))
        return r

    def spread(groups, n):
        out = [[] for _ in range(n)]
        k = len(groups)
        for i, g in enumerate(groups):
            out[min(n - 1, (i * n) // max(k, 1))] += g
        return out

    if wpro:
        a.wait(vm="wp")
        a("s_barrier")
        emit(gat_x)
        if unp: a.wait(vm="bw")
        emit(unp)
        emit(gat_y)
        if gat_w:
            a.wait(lg="all")
            a("s_barrier")
            emit(gat_w)
    if pst:
        stamp()
        a.wait(vm="B1"); stamp()
        a.wait(vm="A0"); stamp()
        a.wait(vm="A1"); stamp()
    a.wait(vm=["A0", "B0"])
    a("s_barrier")
    stamp()
    if not nocomp:
        emit(reads(0, 0)); emit(reads(0, 1))

    for p in range(NPOS):
        q = p + 3
        usep = not nodma and not nopl
        y = reads(p, 2) + reads(p, 3)
        if nocomp: y = []
        G = [[] for _ in range(8)]
        if q < NPOS: G[0] += sig(q, sSigs[q & 1]) + idxrd(q, sg=sSigs[q & 1])
        if usep and p + 1 <= 24: G[0] += pidxrd(p + 1)
        for i in range(6): G[i+1 if i < 3 else i+1] += y[2*i:2*i+2]
        vg = []
        if p == 0:
            grp = {"B": dmaB(2, sKeep), "A": dmaA(2, DIN), "P": [pdma(0, 0), pdma(0, 1)] if not nopl else []}
            for k in ("BAP", "ABP", "PBA", "PAB")[p0]: vg += grp[k]
        if usep and p >= 1: vg.append(pdma(p, 1))
        if not nodma and not bs2 and 3 <= p + 2 < NPOS: vg += dmaB(p + 2, sSigs[p & 1])
        if p == wpslot and not wpro: vg += dmaWP()
        V = spread(vg, 7)
        for i in range(7): G[i+1] += V[i]
        per = spread([[e] for e in extra[p]], 8)
        for i in range(8): G[i] += per[i]
        if p in inl:
            G[7].append(("ds", f"ds_read_b128 v[{WIN}:{WIN+3}], {vWR} offset:{woff(inl[p])}", f"WI{p}"))
        pm = pmfma(inl[p], DT) if p in inl else []
        for i in range(8):
            if not nocomp:
                if i == 0: a.wait(lg=f"R{p}_0")
                if i == (2 if m16 else 4): a.wait(lg=f"R{p}_1")
            elif i == 0: a.wait(lg="all")
            gap(p, 0, i, G[i] + ([("s", pm[i])] if pm else []))
        a.wait(lg="all")
        wt = []
        if p + 1 < NPOS and (not nodma or p + 1 < 3): wt += [f"A{p+1}", f"B{p+1}"]
        if usep and p >= 1: wt.append(f"P{p-1}")
        if p == wt0 - 1 and not wpro: wt.append("wp")
        if p == 0: wt.append("bw")
        if wt: a.wait(vm=wt)
        if p + 1 < NPOS: a("s_barrier")
        if allst or p in (0, 4, 8, 12, 16, 20, 22, 23): stamp()
        vg = []
        if usep and p + 1 <= 24: vg.append(pdma(p + 1, 0))
        if q < NPOS and not nodma:
            vg += dmaA(q)
            if bs2: vg += dmaB(q, sSigs[q & 1])
        for pos, off in cpf:
            if pos == p: vg.append(cpref(off))
        if p == 2:
            vg.append([("s", f"s_lshl_b32 {sT}, {sMt}, 2"), ("s", f"s_mov_b64 exec, {sW0}"),
                       ("vm", f"buffer_atomic_add {vOne}, off, {S_DBG}, {sT} sc1", "rdy"),
                       ("s", "s_mov_b64 exec, -1")])
        if p == 14:
            vg.append([("s", f"s_lshl_b32 {sT}, {sMt}, 2"), ("s", f"s_mov_b64 exec, {sW0}"),
                       ("vm", f"buffer_load_dword {vRdy}, off, {S_DBG}, {sT} sc1", "rchk"),
                       ("s", "s_mov_b64 exec, -1")])
        V = spread(vg, 8)
        x = prd(p - 1) if (usep and p >= 1) else []
        x = x + [None] * (2 - len(x))
        x += (reads(p + 1, 0) + reads(p + 1, 1)) if (p + 1 < NPOS and not nocomp) else []
        if p == NPOS - 1: x += [ring(P) for P in range(nin, nin + 3)]
        po = spread([[e] for e in post[p]], 4)
        fm = fmas(inl[p], DT, WIN) if p in inl else []
        if p == NPOS - 1 and lastpub:
            assert not fm
            b6 = blk6()
            L = [[z for z in x if z], b6[:5], b6[5:], pub(0, 0), pub(0, 1), pub(1, 0), pub(1, 1), pub(2, 0)]
            for i in range(8):
                gap(p, 1, i, L[i], [(2*(i & 1), i >> 1), (2*(i & 1) + 1, i >> 1)] if m16 else (2 + (i & 1), i >> 1))
            continue
        for i in range(8):
            gap(p, 1, i, [z for z in x[2*i:2*i+2] if z] + V[i] + [("s", z) for z in fm[2*i:2*i+2]] +
                (po[i-4] if i >= 4 else []))
        if p == 18:
            a.wait(vm="rchk")
            a(f"s_cmp_lg_u32 {sWv}, 0"); a("s_cbranch_scc1 L_rdy")
            a(f"s_mov_b32 {sCnt}, 0x10000")
            a(f"s_lshl_b32 {sT}, {sMt}, 2")
            a("L_rloop:")
            a(f"v_readfirstlane_b32 {sU}, {vRdy}")
            a(f"s_cmp_ge_u32 {sU}, 8"); a("s_cbranch_scc1 L_rdy")
            a(f"s_sub_u32 {sCnt}, {sCnt}, 1"); a("s_cbranch_scc1 L_rdy")
            a("s_sleep 4")
            a.raw(f"buffer_load_dword {vRdy}, off, {S_DBG}, {sT} sc1")
            a("s_waitcnt vmcnt(0)")
            a("s_branch L_rloop")
            a("L_rdy:")
    stamp()
    done = 5 if lastpub else 0
    for k in range(done, 8): emit(pub(k >> 1, k & 1))
    if not lastpub: emit(blk6())
    stamp(True)

    def xloads(raw):
        for ks in range(4):
            for u in range(2):
                b = 16*ks + 8 + 4*u
                t = (f"buffer_load_dwordx4 v[{b}:{b+3}], {vL16}, {S_WS}, {sU if ks >= 2 else sXL} offen "
                     f"offset:{2048*(ks & 1) + 1024*u}{xlm}")
                if raw: a.raw(t)
                else: a.vmem(t, f"xl{ks}")

    def check(b):
        a(f"v_and_b32 v{b}, v{b}, v{b+1}"); a(f"v_and_b32 v{b+2}, v{b+2}, v{b+3}"); a(f"v_and_b32 v{b}, v{b}, v{b+2}")
        a(f"v_cmp_eq_u32 vcc, 1, v{b}")
    for P in range(nin, 28):
        tp = P - nin
        if P == 21: a.wait(lg="PR24")
        fm = fmas(P - 1, DS3[(P-1) % 3], wreg(P-1)) if tp else []
        if tp and P - 1 < NSH: a.wait(lg=f"RG{P-1}")
        for k, m in enumerate(pmfma(P, DS3[P % 3])):
            a(m)
            for x in fm[2*k:2*k+2]: a(x)
        if P + 3 < NSH: emit([ring(P + 3)])
        def flagst(after):
            a("s_mov_b64 exec, 15")
            a.raw(f"buffer_store_dword {vOne}, {vFl}, {S_WS}, {sFP} offen{flm}")
            a("s_mov_b64 exec, -1")
            a(f"s_mov_b32 s95, {-1 if after else 0}")
        if nbf and tp in nbf and not noex:
            a(f"s_getreg_b32 {sT}, hwreg(HW_REG_IB_STS, 0, 4)")
            a(f"s_cmp_lt_i32 {sT}, s95"); a(f"s_cbranch_scc1 L_do{tp}")
            OOL.append((tp, nst[0]))
            a(f"L_nf{tp}:")
        if nbf and not noex:
            assert len(polls) == 1
            pa, ca = polls[0]
            if tp == ca:
                a("s_cmp_lt_i32 s95, 0"); a("s_cbranch_scc1 L_w1")
                a("s_waitcnt vmcnt(0)")
                a("L_w1:")
                a("s_waitcnt vmcnt(1)")
                a("s_cmp_gt_i32 s95, 0"); a("s_cbranch_scc0 L_w2")
                flagst(True)
                if stamps and not allst:
                    a("s_memrealtime s[98:99]"); a("s_memtime s[100:101]"); a("s_waitcnt lgkmcnt(0)")
                    a(f"v_writelane_b32 {vStamp}, s98, {2*nst[0]}")
                    a(f"v_writelane_b32 {vStamp}, s100, {2*nst[0]+1}")
                a("L_w2:")
                if stamps and not allst: nst[0] += 1
                check(112)
                a(f"s_cbranch_vccz L_late0")
                xloads(True)
                a(f"s_mov_b32 {sGot}, 1")
                a(f"L_late0:")
            if tp == pa:
                a.raw(f"buffer_load_dwordx4 v[112:115], off, {S_WS}, {sFC}{plm}")
                a("s_lshl_b32 s95, s95, 1")
        if tp == flagpair and not noex and not nbf:
            a.wait(vm="xs")
            a("s_mov_b64 exec, 15")
            a.vmem(f"buffer_store_dword {vOne}, {vFl}, {S_WS}, {sFP} offen{flm}", "fl")
            a("s_mov_b64 exec, -1")
            stamp(True)
        if tp in (flagpair + 1, flagpair + 2):
            assert P < 21
            if not nodma and not nopl: a.wait(vm="P24")
            for s_ in range(2*(tp - flagpair - 1), 2*(tp - flagpair)):
                for h in range(2):
                    a.ds(f"ds_read_b128 {FR(6,s_,h)}, v{144 + (s_ ^ (2*h))} offset:{3072 + 512*s_}", "PR24")
        for k, (pa, ca) in enumerate(polls):
            if noex or nbf: break
            b = 112 + 4*(k & 1)
            if tp == ca:
                if k: a(f"s_cmp_lg_u32 {sGot}, 0"); a(f"s_cbranch_scc1 L_late{k}")
                a.wait(vm=f"pl{k}")
                check(b)
                a(f"s_cbranch_vccz L_late{k}")
                xloads(True)
                a(f"s_mov_b32 {sGot}, 1")
                a(f"L_late{k}:")
            if tp == pa:
                a.vmem(f"buffer_load_dwordx4 v[{b}:{b+3}], off, {S_WS}, {sFC}{plm}", f"pl{k}")
    if NSH == 28: a.wait(lg="RG27")
    for x in fmas(27, DS3[27 % 3], wreg(27)): a(x)
    for s in range(4):
        a(f"v_add_f32 v{PACC+2*s}, v{PACC+2*s}, v{PACC+2*s+1}")
        if in2: a(f"v_add_f32 v{PACC+2*s}, v{PACC+2*s}, v{LA[s]}")
    a(f"v_lshrrev_b32 v148, 5, {vL}")
    a(f"s_lshl_b32 {sT}, {sWv}, 9")
    a(f"s_add_u32 {sT}, {sT}, {RED + 64}")
    a(f"v_permlane32_swap_b32 v{PACC}, v{PACC+2}")
    a(f"v_permlane32_swap_b32 v{PACC+4}, v{PACC+6}")
    a(f"v_lshl_add_u32 v148, v148, 7, {sT}")
    a(f"v_add_f32 v{PACC}, v{PACC}, v{PACC+2}")
    a(f"v_add_f32 v{PACC+4}, v{PACC+4}, v{PACC+6}")
    for sh in (1, 2, 4, 8):
        for r in (PACC, PACC+4):
            a(f"v_add_f32_dpp v{r}, v{r}, v{r} row_shr:{sh} row_mask:0xf bank_mask:0xf bound_ctrl:0")
    for r in (PACC, PACC+4):
        a(f"v_add_f32_dpp v{r}, v{r}, v{r} row_bcast:15 row_mask:0xa bank_mask:0xf")
    a("s_mov_b32 exec_lo, 0x80000000"); a("s_mov_b32 exec_hi, 0x80000000")
    a.ds(f"ds_write_b32 v148, v{PACC}", "pw")
    a.ds(f"ds_write_b32 v148, v{PACC+4} offset:256", "pw")
    a("s_mov_b64 exec, -1")
    stamp(True)
    K1 = -2.0 * 1.4426950408889634 * 0.7978845608028654
    K2 = K1 * 0.044715
    a(f"s_mov_b32 s4, {fb(K2)}"); a(f"s_mov_b32 s5, {fb(K2)}")
    if not noex:
        a(f"s_cmp_lg_u32 {sGot}, 0"); a("s_cbranch_scc1 L_have")
        a(f"s_mov_b32 {sCnt}, 0x10000")
        a.raw(f"buffer_load_dwordx4 v[112:115], off, {S_WS}, {sFC}{plm}")
        if slp: a(f"s_sleep {slp}")
        a("L_poll:")
        a.raw(f"buffer_load_dwordx4 v[116:119], off, {S_WS}, {sFC}{plm}")
        a("s_waitcnt vmcnt(1)")
        check(112)
        a("s_cbranch_vccnz L_go")
        a.raw(f"buffer_load_dwordx4 v[112:115], off, {S_WS}, {sFC}{plm}")
        a("s_waitcnt vmcnt(1)")
        check(116)
        a("s_cbranch_vccnz L_go")
        a(f"s_sub_u32 {sCnt}, {sCnt}, 1"); a("s_cbranch_scc0 L_poll")
        a("L_go:")
        xloads(True)
        a("L_have:")
        a.vm_done = len(a.vm)
        for ks in range(4):
            a.vm += [f"xl{ks}"] * 2
    else:
        xloads(False)
    stamp(True)
    a(f"v_mov_b32 v144, {fb(K1)}"); a(f"v_mov_b32 v145, {fb(K1)}")
    a(f"v_and_b32 v146, 15, {vL}")
    a(f"v_lshrrev_b32 v147, 4, {vL}")
    a("v_lshlrev_b32 v146, 7, v146")
    a("v_lshl_add_u32 v146, v147, 2, v146")
    a(f"s_lshl_b32 {sT}, {sWv}, 4")
    a(f"s_add_u32 {sT}, {sT}, {RED}")
    a(f"v_add_u32 v146, {sT}, v146")
    a(f"v_lshrrev_b32 v147, 2, {vL}")
    a(f"v_and_b32 v148, 3, {vL}")
    a("v_lshlrev_b32 v149, 7, v147")
    a(f"v_add_u32 v149, {RED}, v149")
    a("v_lshl_add_u32 v148, v148, 4, v149")
    a("v_lshlrev_b32 v147, 1, v147")
    X = B1F; T = 64; U = 80
    for ks in range(4):
        a.wait(vm=f"xl{ks}")
        for r in range(8):
            src = 16*ks + 8 + r
            a(f"v_lshlrev_b32 v{U+2*r}, 16, v{src}")
            a(f"v_and_b32 v{U+2*r+1}, {sHi}, v{src}")
        for r in range(8):
            a(f"v_pk_add_f32 v[{X+2*r}:{X+2*r+1}], v[{X+2*r}:{X+2*r+1}], v[{U+2*r}:{U+2*r+1}]")
    stamp(True)
    for r in range(0, 16, 2):
        a(f"v_pk_mul_f32 v[{T+r}:{T+r+1}], v[{X+r}:{X+r+1}], v[{X+r}:{X+r+1}]")
    for r in range(0, 16, 2):
        a(f"v_pk_fma_f32 v[{T+r}:{T+r+1}], v[{T+r}:{T+r+1}], s[4:5], v[144:145]")
    for r in range(0, 16, 2):
        a(f"v_pk_mul_f32 v[{T+r}:{T+r+1}], v[{T+r}:{T+r+1}], v[{X+r}:{X+r+1}]")
    for r in range(16):
        a(f"v_exp_f32 v{T+r}, v{T+r}")
    for r in range(0, 16, 2):
        a(f"v_pk_add_f32 v[{T+r}:{T+r+1}], v[{T+r}:{T+r+1}], 1.0 op_sel_hi:[1,0]")
    for r in range(16):
        a(f"v_rcp_f32 v{T+r}, v{T+r}")
    for r in range(0, 16, 2):
        a(f"v_pk_mul_f32 v[{X+r}:{X+r+1}], v[{X+r}:{X+r+1}], v[{W2F+r}:{W2F+r+1}]")
    a(f"v_pk_mul_f32 v[120:121], v[{X}:{X+1}], v[{T}:{T+1}]")
    a(f"v_pk_mul_f32 v[122:123], v[{X+2}:{X+3}], v[{T+2}:{T+3}]")
    for r in range(4, 16, 4):
        a(f"v_pk_fma_f32 v[120:121], v[{X+r}:{X+r+1}], v[{T+r}:{T+r+1}], v[120:121]")
        a(f"v_pk_fma_f32 v[122:123], v[{X+r+2}:{X+r+3}], v[{T+r+2}:{T+r+3}], v[122:123]")
    a("v_pk_add_f32 v[120:121], v[120:121], v[122:123]")
    a("v_add_f32 v120, v120, v121")
    a.ds("ds_write_b32 v146, v120", "dw")
    a.wait(lg="all")
    a("s_barrier")
    a(f"s_cmp_lg_u32 {sWv}, 0"); a("s_cbranch_scc1 L_end")
    a.ds("ds_read_b128 v[124:127], v148", "fr")
    a.ds("ds_read_b32 v150, v149 offset:64", "fr")
    a(f"s_lshl3_add_u32 s3, {sMt}, {sC}")
    a("s_lshl_b32 s3, s3, 5")
    a.wait(lg="all")
    a("v_add_f32 v124, v124, v125"); a("v_add_f32 v126, v126, v127"); a("v_add_f32 v124, v124, v126")
    a("v_add_f32_dpp v124, v124, v124 quad_perm:[1,0,3,2] row_mask:0xf bank_mask:0xf")
    a("v_add_f32_dpp v124, v124, v124 quad_perm:[2,3,0,1] row_mask:0xf bank_mask:0xf")
    a("v_cvt_pk_bf16_f32 v124, v124, v150")
    a(f"v_and_b32 v150, {sHi}, v124")
    a("v_lshlrev_b32 v124, 16, v124")
    a(f"v_add_f32 v124, v124, {vB2}")
    a("v_cvt_pk_bf16_f32 v124, v124, v124")
    a("v_lshlrev_b32 v124, 16, v124")
    a("v_add_f32 v124, v124, v150")
    a("v_cvt_pk_bf16_f32 v124, v124, v124")
    a(f"s_mov_b64 exec, {sM6}")
    a.vmem(f"buffer_store_short v124, v147, {S_OUT}, s3 offen", "o")
    if stamps:
        a("s_mov_b64 exec, -1")
        a("s_waitcnt vmcnt(0)")
        stamp()
        a(f"s_mul_i32 s3, s2, {8*nst[0]}")
        a(f"v_lshlrev_b32 v59, 2, {vL}")
        a(f"v_cmp_gt_u32 vcc, {2*nst[0]}, {vL}")
        a("s_and_saveexec_b64 s[4:5], vcc")
        a.vmem(f"buffer_store_dword {vStamp}, v59, {S_WS}, s3 offen", "sx")
    if OOL:
        a("s_endpgm")
        for tp, ns in OOL:
            a(f"L_do{tp}:")
            flagst(tp > polls[0][0])
            if stamps and not allst:
                a("s_memrealtime s[98:99]"); a("s_memtime s[100:101]"); a("s_waitcnt lgkmcnt(0)")
                a(f"v_writelane_b32 {vStamp}, s98, {2*ns}")
                a(f"v_writelane_b32 {vStamp}, s100, {2*ns+1}")
            a(f"s_branch L_nf{tp}")
    a("L_end:")
    body = a.finish()
    sys.stderr.write(f"instructions: {len(a.L)} nops: {a.nops} stamps: {nst[0]} autowaits: {getattr(a,'auto_waits',0)}\n")
    return header(256, 256, LDSB) + body + footer(512, 256)


if __name__ == "__main__":
    out = sys.argv[1]
    kw = {}
    for x in sys.argv[2:]:
        k, _, v = x.lstrip("-").partition("=")
        kw[k] = eval(v) if v else True
    open(out, "w").write(gen(**kw))
```
